```python
import torch

def _softmax(x, axis=-1):
    return torch.softmax(x, dim=axis)
def _gelu(x):
    return torch.nn.functional.gelu(x, approximate="tanh")
def _silu(x):
    return torch.nn.functional.silu(x)
def _sigmoid(x):
    return torch.sigmoid(x)
def _layernorm(x, axis=-1, eps=1e-5):
    m = x.mean(dim=axis, keepdim=True)
    v = x.var(dim=axis, keepdim=True, unbiased=False)
    return (x - m) / torch.sqrt(v + eps)
def _scatter_add(tgt, idx, src, axis=0):
    return tgt.clone().index_add_(axis, idx, src)
def _segment_sum(src, seg, n):
    out = torch.zeros((n,) + src.shape[1:], dtype=src.dtype)
    return out.index_add_(0, seg, src)
def _pad(x, pw):
    flat = tuple(v for pair in reversed(pw) for v in pair)
    return torch.nn.functional.pad(x, flat)

kernel_name = 'parallel_sum__linear_kernel_hedgehog__dense_activation_silu__prompt'

def setup_inputs():

    _w = (lambda a: (lambda t: t.to(torch.bfloat16) if t.is_floating_point() else t)(torch.as_tensor(a)))
    def _A_setup():
        B, S, D, H = 1, 2048, 576, 32
        Dh = D // H
        return {
            "x": _w((lambda *s: torch.randn(*s, dtype=torch.bfloat16) * 0.05)(B, S, D)),
            "wqkv": _w((lambda *s: torch.randn(*s, dtype=torch.bfloat16) * 0.2)(D, 3 * D)),
            "w_phi": _w((lambda *s: torch.randn(*s, dtype=torch.bfloat16) * 0.2)(H, Dh, Dh) * (Dh ** -0.5)),
            "wo": _w((lambda *s: torch.randn(*s, dtype=torch.bfloat16) * 0.05)(D, D)),
        }
    _A_in = _A_setup()

    def _B_setup():
        B, S, D, F = 1, 2048, 576, 4608
        return {
            "x": _w((lambda *s: torch.randn(*s, dtype=torch.bfloat16) * 0.05)(B, S, D)),
            "w1": _w((lambda *s: torch.randn(*s, dtype=torch.bfloat16) * 1.6)(D, F) * (D ** -0.5)),
            "w2": _w((lambda *s: torch.randn(*s, dtype=torch.bfloat16) * 0.1)(F, D) * (F ** -0.5)),
        }
    _B_in = _B_setup()

    return {
        "A_x": _A_in["x"],
        "A_wqkv": _A_in["wqkv"],
        "A_w_phi": _A_in["w_phi"],
        "A_wo": _A_in["wo"],
        "B_x": _B_in["x"],
        "B_w1": _B_in["w1"],
        "B_w2": _B_in["w2"],
    }

def reference(A_x, A_wqkv, A_w_phi, A_wo, B_x, B_w1, B_w2):
    def _A_ref(x, wqkv, w_phi, wo):
        B, S, D = x.shape
        H = 32; Dh = D // H
        qkv = (lambda x, *d: x.permute(*d))((x @ wqkv).reshape(B, S, 3, H, Dh), 2, 0, 3, 1, 4)
        q, k, v = qkv[0], qkv[1], qkv[2]
        pq = torch.einsum("bhsd,hdf->bhsf", q, w_phi)
        pk = torch.einsum("bhsd,hdf->bhsf", k, w_phi)
        phi_q = torch.concatenate([_softmax(pq, axis=-1), _softmax(-pq, axis=-1)], axis=-1)
        phi_k = torch.concatenate([_softmax(pk, axis=-1), _softmax(-pk, axis=-1)], axis=-1)
        kv = torch.einsum("bhsf,bhsd->bhfd", phi_k, v)
        z  = torch.einsum("bhsf->bhf", phi_k)
        num = torch.einsum("bhqf,bhfd->bhqd", phi_q, kv)
        den = torch.einsum("bhqf,bhf->bhq", phi_q, z)[..., None] + 1e-6
        o = num / den
        return (lambda x, *d: x.permute(*d))(o, 0, 2, 1, 3).reshape(B, S, D) @ wo

    def _B_ref(x, w1, w2):
        h = torch.einsum("bsd,df->bsf", x, w1)
        h = _silu(h)
        out = torch.einsum("bsf,fd->bsd", h, w2)
        return out

    x = A_x
    xn = _layernorm(x, axis=-1)
    return x + _A_ref(xn, A_wqkv, A_w_phi, A_wo) + _B_ref(xn, B_w1, B_w2)
```

```python
class Asm:
    def __init__(self):
        self.lines = []
        self.vm = []
        self.lg = []

    def __call__(self, s):
        for ln in s.strip("\n").split("\n"):
            self.lines.append("    " + ln.strip())

    def comment(self, s):
        self.lines.append("    ; " + s)

    def label(self, name):
        self.lines.append(name + ":")

    def raw(self, s):
        self.lines.append(s)

    def vm_op(self, text, tag=None):
        self(text)
        self.vm.append(tag)

    def lg_op(self, text, tag=None):
        self(text)
        self.lg.append(tag)

    def _wait_count(self, q, tags):
        last = -1
        for i, t in enumerate(q):
            if t in tags:
                last = i
        if last < 0:
            return None
        return len(q) - 1 - last

    def wait_vm(self, *tags):
        n = self._wait_count(self.vm, tags)
        if n is None:
            return
        assert n <= 63
        self(f"s_waitcnt vmcnt({n})")
        self.vm = self.vm[len(self.vm) - n:] if n > 0 else []

    def wait_lg(self, *tags):
        n = self._wait_count(self.lg, tags)
        if n is None:
            return
        n = min(n, 15)
        self(f"s_waitcnt lgkmcnt({n})")
        self.lg = self.lg[len(self.lg) - n:] if n > 0 else []

    def wait_all(self, vm=True, lg=True):
        parts = []
        if vm:
            parts.append("vmcnt(0)")
            self.vm = []
        if lg:
            parts.append("lgkmcnt(0)")
            self.lg = []
        self("s_waitcnt " + " ".join(parts))

    def nop(self, n):
        while n > 0:
            k = min(n, 16)
            self(f"s_nop {k-1}")
            n -= k

    def text(self):
        return "\n".join(self.lines) + "\n"


def vr(base, n=1):
    return f"v{base}" if n == 1 else f"v[{base}:{base+n-1}]"


def ar(base, n=1):
    return f"a{base}" if n == 1 else f"a[{base}:{base+n-1}]"


def sr(base, n=1):
    return f"s{base}" if n == 1 else f"s[{base}:{base+n-1}]"


def magic_div(d, maxn):
    for shift in range(8, 24):
        mul = -(-(1 << shift) // d)
        if mul * maxn >= (1 << 32):
            continue
        if all(((n * mul) >> shift) == n // d for n in range(maxn + 1)):
            return mul, shift
    raise ValueError("no magic")


def bank_conflicts_b64(addrs):
    worst = 1
    for half in range(2):
        use = {}
        for l in range(32 * half, 32 * half + 32):
            a = addrs[l]
            for d in range(2):
                dw = a // 4 + d
                use.setdefault(dw % 64, set()).add(dw)
        worst = max(worst, max(len(s) for s in use.values()))
    return worst
```

```python
from asmlib import Asm, vr, ar, sr, magic_div, bank_conflicts_b64
from gen import (kernel_header, make_srd, f32hex, S, D, F, H,
                 KA_X, KA_WQKV, KA_WPHI, KA_WO, KA_W1, KA_W2, KA_OUT, KA_WS,
                 ACT_KS, WS_ACT, ACT_SIZE, WS_PHIQ, PHIQ_SIZE, WS_KVP, KVP_SIZE, WS_PART, PART_SIZE)


def gen_k2(a, label):
    kernel_header(a, label)
    sWS = 4
    SRD_ACT, SRD_PQ, SRD_KV = 8, 12, 16
    sH, sC, sT0, sT1 = 20, 21, 22, 23
    a("s_load_dwordx2 s[4:5], s[0:1], %d" % KA_WS)
    a("s_cmp_ge_u32 s2, 256")
    a(f"s_cbranch_scc1 L_{label}_end")
    a(f"s_and_b32 s{sH}, s2, 31")
    a(f"s_lshr_b32 s{sC}, s2, 5")
    a("s_waitcnt lgkmcnt(0)")
    make_srd(a, SRD_ACT, sWS, ACT_SIZE)
    make_srd(a, SRD_PQ, sWS, PHIQ_SIZE, WS_PHIQ)
    make_srd(a, SRD_KV, sWS, KVP_SIZE, WS_KVP)
    vT, vA, vQ = 1, 2, 3
    vPQ = 4
    vKV = 24
    vAcc = 120
    a(f"s_lshl_b32 s{sT0}, s{sC}, 8")
    a(f"v_add_u32 v{vT}, s{sT0}, v0")
    a(f"s_lshl_b32 s{sT1}, s{sH}, 11")
    a(f"v_add_u32 v{vQ}, s{sT1}, v{vT}")
    a(f"v_mul_u32_u24 v{vQ}, 72, v{vQ}")
    for k in range(9):
        a.vm_op(f"buffer_load_dwordx2 {vr(vPQ+2*k,2)}, v{vQ}, s[{SRD_PQ}:{SRD_PQ+3}], 0 offen offset:{8*k}", "pq")
    a(f"v_lshlrev_b32 v{vA}, 2, v0")
    vA2 = 22
    a(f"v_add_u32 v{vA2}, 4096, v{vA}")
    a(f"s_mul_i32 s{sT0}, s{sH}, 6144")
    def kv_issue(mt):
        for i in range(6):
            va = vA if i < 4 else vA2
            a.vm_op(f"buffer_load_dword v{vKV+mt*6+i}, v{va}, s[{SRD_KV}:{SRD_KV+3}], s{sT0} offen offset:{(i%4)*1024}", ("kv", mt))
        a(f"s_add_u32 s{sT0}, s{sT0}, {32*6144}")
    for mt in range(8):
        kv_issue(mt)
    for mt in range(16):
        if mt + 8 < 16:
            kv_issue(mt + 8)
        a.wait_vm(("kv", mt))
        for i in range(6):
            if mt == 0:
                a(f"v_mov_b32 v{vAcc+i}, v{vKV+i}")
            else:
                a(f"v_add_f32 v{vAcc+i}, v{vAcc+i}, v{vKV+mt*6+i}")
    for i in range(6):
        a.lg_op(f"ds_write_b32 v{vA}, v{vAcc+i} offset:{i*1024}", "kw")
    vF = 24
    a.wait_vm("pq")
    for k in range(18):
        a(f"v_lshlrev_b32 v{vF+2*k}, 16, v{vPQ+k}")
        a(f"v_and_b32 v{vF+2*k+1}, 0xffff0000, v{vPQ+k}")
    vNum = 64
    for d in range(19):
        a(f"v_mov_b32 v{vNum+d}, 0")
    a(f"v_mov_b32 v{vQ}, 0")
    a.wait_lg("kw")
    a("s_barrier")
    vR = 88
    for f in range(36):
        rb = vR + (f % 2) * 20
        for c in range(5):
            a.lg_op(f"ds_read_b128 {vr(rb+4*c,4)}, v{vQ} offset:{f*128 + 16*c}", ("row", f))
        if f >= 1:
            pb = vR + ((f - 1) % 2) * 20
            a.wait_lg(("row", f - 1))
            for d in range(19):
                a(f"v_fmac_f32 v{vNum+d}, v{vF+f-1}, v{pb+d}")
    a.wait_lg(("row", 35))
    for d in range(19):
        a(f"v_fmac_f32 v{vNum+d}, v{vF+35}, v{vR+20+d}")
    a(f"v_add_f32 v{vNum+18}, {f32hex(1e-6)}, v{vNum+18}")
    a(f"v_rcp_f32 v{vNum+18}, v{vNum+18}")
    a("s_nop 0")
    for d in range(18):
        a(f"v_mul_f32 v{vNum+d}, v{vNum+d}, v{vNum+18}")
    vO = 4
    for p in range(9):
        a(f"v_cvt_pk_bf16_f32 v{vO+p}, v{vNum+2*p}, v{vNum+2*p+1}")
    a(f"v_lshrrev_b32 v{vA}, 4, v{vT}")
    a(f"s_mov_b32 s{sT0}, {ACT_KS*1024}")
    a(f"v_mul_lo_u32 v{vA}, v{vA}, s{sT0}")
    a(f"v_and_b32 v{vQ}, 15, v{vT}")
    a(f"v_lshl_add_u32 v{vA}, v{vQ}, 4, v{vA}")
    a(f"s_mul_i32 s{sT1}, s{sH}, 18")
    for p in range(9):
        a(f"s_add_u32 s{sT0}, s{sT1}, {2*p}")
        a(f"s_lshr_b32 s24, s{sT0}, 5")
        a(f"s_lshl_b32 s24, s24, 10")
        a(f"s_bfe_u32 s25, s{sT0}, 0x20003")
        a(f"s_lshl_b32 s25, s25, 8")
        a(f"s_add_u32 s24, s24, s25")
        a(f"s_and_b32 s25, s{sT0}, 7")
        a(f"s_lshl_b32 s25, s25, 1")
        a(f"s_add_u32 s24, s24, s25")
        a.vm_op(f"buffer_store_dword v{vO+p}, v{vA}, s[{SRD_ACT}:{SRD_ACT+3}], s24 offen", "os")
    a.label(f"L_{label}_end")
    a("s_endpgm")
    return 128, 0, 6144


K3_R = 6
K3_STR = 20480
K3_SPLITS = [(0, 42), (42, 82), (82, 122), (122, 162)]


def k3_pos(row, col):
    b, c = divmod(col, 16)
    par = (row >> 3) & 1
    return row * 320 + ((b ^ par) * 16 + c) * 2


def check_k3_layout():
    worst = 1
    for half2 in range(2):
        for b in range(9):
            addrs = []
            for l in range(64):
                g, i4 = divmod(l, 16)
                r, c = divmod(i4, 4)
                row = 8 * g + r + 4 * half2
                addrs.append(k3_pos(row, 16 * b + 4 * c))
            worst = max(worst, bank_conflicts_b64(addrs))
    return worst


def gen_k3(a, label):
    kernel_header(a, label)
    sWO, sW2, sWS = 4, 6, 8
    SRD_WO, SRD_W2, SRD_ACT, SRD_PT = 12, 16, 20, 24
    sS, sMT, sNT, sWV = 28, 29, 30, 31
    sT0, sT1, sT2, sSof, sM0 = 32, 33, 34, 35, 36
    vL, vG, vTT = 1, 2, 3
    vT0, vT1, vT2, vT3, vT4 = 4, 5, 6, 7, 8
    vD = 9
    vA = 14
    vAct = 18
    vP = 19
    vFR = 24
    NSLOT = 8
    vAF = 56
    ADEPTH = 8
    AD = 6
    PD = 6
    NV = 120

    def acc(b, tb):
        return (b * 2 + tb) * 4

    a("s_load_dwordx2 s[4:5], s[0:1], %d" % KA_WO)
    a("s_load_dwordx2 s[6:7], s[0:1], %d" % KA_W2)
    a("s_load_dwordx2 s[8:9], s[0:1], %d" % KA_WS)
    a("s_cmp_ge_u32 s2, 256")
    a(f"s_cbranch_scc1 L_{label}_end")
    a(f"s_and_b32 s{sS}, s2, 3")
    a(f"s_bfe_u32 s{sMT}, s2, 0x40002")
    a(f"s_lshr_b32 s{sNT}, s2, 6")
    a(f"v_and_b32 v{vL}, 63, v0")
    a(f"v_lshrrev_b32 v{vT0}, 6, v0")
    a(f"v_lshrrev_b32 v{vG}, 4, v{vL}")
    a(f"v_and_b32 v{vTT}, 15, v{vL}")
    a(f"v_readfirstlane_b32 s{sWV}, v{vT0}")
    a("s_waitcnt lgkmcnt(0)")
    make_srd(a, SRD_WO, sWO, D * D * 2)
    make_srd(a, SRD_W2, sW2, F * D * 2)
    make_srd(a, SRD_ACT, sWS, ACT_SIZE)
    make_srd(a, SRD_PT, sWS, PART_SIZE, WS_PART)
    m20, s20 = magic_div(20, 1280)
    a(f"s_mul_i32 s{sT2}, s{sNT}, 288")
    for i in range(5):
        a(f"s_lshl_b32 s{sT0}, s{sWV}, 6")
        a(f"s_add_u32 s{sT0}, s{sT0}, {256*i}")
        a(f"v_add_u32 v{vT0}, s{sT0}, v{vL}")
        a(f"v_mul_u32_u24 v{vT1}, {m20}, v{vT0}")
        a(f"v_lshrrev_b32 v{vT1}, {s20}, v{vT1}")
        a(f"v_mul_u32_u24 v{vT2}, 20, v{vT1}")
        a(f"v_sub_u32 v{vT2}, v{vT0}, v{vT2}")
        a(f"v_lshrrev_b32 v{vT3}, 1, v{vT2}")
        a(f"v_bfe_u32 v{vT4}, v{vT1}, 3, 1")
        a(f"v_xor_b32 v{vT3}, v{vT3}, v{vT4}")
        a(f"v_and_b32 v{vT2}, 1, v{vT2}")
        a(f"v_lshlrev_b32 v{vT4}, 5, v{vT3}")
        a(f"v_lshl_add_u32 v{vT4}, v{vT2}, 4, v{vT4}")
        a(f"v_mul_u32_u24 v{vT1}, 1152, v{vT1}")
        a(f"v_add3_u32 v{vT1}, v{vT1}, v{vT4}, s{sT2}")
        a(f"v_cmp_lt_u32 vcc, 8, v{vT3}")
        a(f"v_mov_b32 v{vT4}, 0x80000000")
        a("s_nop 1")
        a(f"v_cndmask_b32 v{vD+i}, v{vT1}, v{vT4}, vcc")
    a(f"v_lshrrev_b32 v{vT0}, 2, v{vTT}")
    a(f"v_lshl_add_u32 v{vT0}, v{vG}, 3, v{vT0}")
    a(f"v_and_b32 v{vT1}, 3, v{vTT}")
    a(f"v_and_b32 v{vT2}, 1, v{vG}")
    a(f"v_mul_u32_u24 v{vT3}, 320, v{vT0}")
    a(f"v_lshl_add_u32 v{vT3}, v{vT1}, 3, v{vT3}")
    a(f"v_lshlrev_b32 v{vT4}, 5, v{vT2}")
    a(f"v_add_u32 v{vA}, v{vT3}, v{vT4}")
    a(f"v_sub_u32 v{vA+1}, v{vT3}, v{vT4}")
    a(f"v_add_u32 v{vA+2}, {3*K3_STR}, v{vA}")
    a(f"v_add_u32 v{vA+3}, {3*K3_STR}, v{vA+1}")
    a(f"s_lshl_b32 s{sT0}, s{sMT}, 3")
    a(f"s_lshl_b32 s{sT1}, s{sWV}, 1")
    a(f"s_add_u32 s{sT0}, s{sT0}, s{sT1}")
    a(f"s_mul_i32 s{sT0}, s{sT0}, {ACT_KS*1024}")
    a(f"v_lshlrev_b32 v{vAct}, 4, v{vL}")
    a(f"v_add_u32 v{vAct}, s{sT0}, v{vAct}")
    a(f"s_lshl_b32 s{sT0}, s{sS}, 11")
    a(f"s_lshl_b32 s{sT1}, s{sMT}, 7")
    a(f"s_add_u32 s{sT0}, s{sT0}, s{sT1}")
    a(f"s_lshl_b32 s{sT1}, s{sWV}, 5")
    a(f"s_add_u32 s{sT0}, s{sT0}, s{sT1}")
    a(f"v_add_u32 v{vT0}, s{sT0}, v{vTT}")
    a(f"v_mul_u32_u24 v{vT0}, 576, v{vT0}")
    a(f"s_mul_i32 s{sT1}, s{sNT}, 144")
    a(f"v_lshl_add_u32 v{vT0}, v{vG}, 2, v{vT0}")
    a(f"v_add_u32 v{vT0}, s{sT1}, v{vT0}")
    a(f"v_lshlrev_b32 v{vP}, 2, v{vT0}")
    a(f"s_lshl_b32 s{sM0}, s{sWV}, 10")

    a(f"s_cmp_eq_u32 s{sS}, 0")
    a(f"s_cbranch_scc0 L_{label}_v1")

    def variant(nks, ks0_expr, from_wo_stages):
        nst = nks // 2
        NB = 9
        ks0_expr()

        def issue_stage(st):
            r = st % K3_R
            if st < from_wo_stages:
                srd, sof = SRD_WO, st * 64 * 1152
            else:
                srd, sof = SRD_W2, None
            for i in range(5):
                a(f"s_add_u32 m0, s{sM0}, {r*K3_STR + i*4096}")
                if sof is not None:
                    a(f"s_mov_b32 s{sT0}, {sof}")
                    so = sT0
                else:
                    so = sSof
                a.vm_op(f"buffer_load_dwordx4 v{vD+i}, s[{srd}:{srd+3}], s{so} offen lds", ("st", st))
            if sof is None:
                a(f"s_add_u32 s{sSof}, s{sSof}, {64*1152}")

        def issue_act(j):
            for tb in range(2):
                dst = vAF + ((j % ADEPTH) * 2 + tb) * 4
                a(f"s_add_u32 s{sT1}, s{sT2}, {j*1024 + tb*ACT_KS*1024}")
                a.vm_op(f"buffer_load_dwordx4 {vr(dst,4)}, v{vAct}, s[{SRD_ACT}:{SRD_ACT+3}], s{sT1} offen", ("act", j))

        def frag_reads(i):
            j, b = divmod(i, NB)
            st, jj = divmod(j, 2)
            r = st % K3_R
            va = vA + (r // 3) * 2 + (b % 2)
            off = (r % 3) * K3_STR + jj * 32 * 320 + b * 32
            dst = vFR + (i % NSLOT) * 4
            a.lg_op(f"ds_read_b64_tr_b16 {vr(dst,2)}, v{va} offset:{off}", ("fr", i))
            a.lg_op(f"ds_read_b64_tr_b16 {vr(dst+2,2)}, v{va} offset:{off+4*320}", ("fr", i))

        def sync_stage(st):
            a.wait_vm(("st", st))
            a("s_barrier")
            if st + K3_R - 2 < nst:
                issue_stage(st + K3_R - 2)

        for j in range(min(AD, nks)):
            issue_act(j)
        for st in range(min(K3_R - 2, nst)):
            issue_stage(st)
        total = nks * NB
        sync_stage(0)
        for i in range(PD):
            frag_reads(i)
        for i in range(total):
            j, b = divmod(i, NB)
            if b == 0 and j + AD < nks:
                issue_act(j + AD)
            nx = i + PD
            if nx < total:
                j2, b2 = divmod(nx, NB)
                if b2 == 0 and j2 % 2 == 0:
                    sync_stage(j2 // 2)
                frag_reads(nx)
            if b == 0:
                a.wait_vm(("act", j))
            a.wait_lg(("fr", i))
            fr = vFR + (i % NSLOT) * 4
            for tb in range(2):
                c = "0" if j == 0 else ar(acc(b, tb), 4)
                af = vAF + ((j % ADEPTH) * 2 + tb) * 4
                a(f"v_mfma_f32_16x16x32_bf16 {ar(acc(b,tb),4)}, {vr(fr,4)}, {vr(af,4)}, {c}")
        a(f"s_branch L_{label}_epi")

    def v0_setup():
        a(f"s_mov_b32 s{sSof}, 0")
        a(f"s_mov_b32 s{sT2}, 0")

    def v1_setup():
        a(f"s_mul_i32 s{sT0}, s{sS}, 40")
        a(f"s_add_u32 s{sT0}, s{sT0}, 2")
        a(f"s_lshl_b32 s{sT2}, s{sT0}, 10")
        a(f"s_sub_u32 s{sT0}, s{sT0}, 18")
        a(f"s_mul_i32 s{sSof}, s{sT0}, {32*1152}")

    save_vm, save_lg = list(a.vm), list(a.lg)
    variant(42, v0_setup, 9)
    a.vm, a.lg = list(save_vm), list(save_lg)
    a.label(f"L_{label}_v1")
    variant(40, v1_setup, 0)
    a.label(f"L_{label}_epi")
    a.vm, a.lg = [], []
    a.nop(10)
    for b in range(9):
        for tb in range(2):
            a(f"s_mov_b32 s{sT0}, {tb*16*576*4 + b*64}")
            a(f"buffer_store_dwordx4 {ar(acc(b,tb),4)}, v{vP}, s[{SRD_PT}:{SRD_PT+3}], s{sT0} offen")
    a.label(f"L_{label}_end")
    a("s_endpgm")
    return NV, 72, K3_R * K3_STR


def gen_k4(a, label):
    kernel_header(a, label)
    a("s_load_dwordx2 s[4:5], s[0:1], %d" % KA_X)
    a("s_load_dwordx2 s[6:7], s[0:1], %d" % KA_OUT)
    a("s_load_dwordx2 s[8:9], s[0:1], %d" % KA_WS)
    a("s_cmp_ge_u32 s2, 576")
    a(f"s_cbranch_scc1 L_{label}_end")
    a("s_waitcnt lgkmcnt(0)")
    make_srd(a, 12, 4, S * D * 2)
    make_srd(a, 16, 6, S * D * 2)
    make_srd(a, 20, 8, PART_SIZE, WS_PART)
    a("s_lshl_b32 s24, s2, 8")
    a("v_add_u32 v1, s24, v0")
    a("v_lshlrev_b32 v2, 4, v1")
    a("v_lshlrev_b32 v3, 5, v1")
    a.vm_op("buffer_load_dwordx4 v[4:7], v2, s[12:15], 0 offen", "x")
    for s_ in range(4):
        a(f"s_mov_b32 s25, {s_*S*D*4}")
        a.vm_op(f"buffer_load_dwordx4 v[{8+8*s_}:{11+8*s_}], v3, s[20:23], s25 offen", ("p", s_))
        a.vm_op(f"buffer_load_dwordx4 v[{12+8*s_}:{15+8*s_}], v3, s[20:23], s25 offen offset:16", ("p", s_))
    a.wait_vm("x")
    for k in range(4):
        a(f"v_lshlrev_b32 v{40+2*k}, 16, v{4+k}")
        a(f"v_and_b32 v{41+2*k}, 0xffff0000, v{4+k}")
    for s_ in range(4):
        a.wait_vm(("p", s_))
        for k in range(8):
            a(f"v_add_f32 v{40+k}, v{40+k}, v{8+8*s_+k}")
    for k in range(4):
        a(f"v_cvt_pk_bf16_f32 v{48+k}, v{40+2*k}, v{41+2*k}")
    a("buffer_store_dwordx4 v[48:51], v2, s[16:19], 0 offen")
    a.label(f"L_{label}_end")
    a("s_endpgm")
    return 56, 0, 0
```

```python
import sys
sys.path.insert(0, "work")
from asmlib import Asm, vr, ar, sr, magic_div, bank_conflicts_b64

NAME = "parallel_sum__linear_kernel_hedgehog__dense_activation_silu__prompt"
S, D, F, H, DH = 2048, 576, 4608, 32, 18

KA_X, KA_WQKV, KA_WPHI, KA_WO, KA_BX, KA_W1, KA_W2, KA_OUT, KA_DBG, KA_WS = [8 * i for i in range(10)]

ACT_KS = 162
WS_ACT = 0
ACT_SIZE = 128 * ACT_KS * 1024
WS_PHIQ = 0x1800000
PHIQ_SIZE = H * S * 72
WS_KVP = 0x2000000
KVP_SIZE = 16 * H * 48 * 32 * 4
WS_PART = 0x3000000
PART_SIZE = 4 * S * D * 4

LOG2E = 1.4426950408889634

PI_OCT = [0, 2, 1, 3]


def f32hex(x):
    import struct
    return "0x%08x" % struct.unpack("<I", struct.pack("<f", x))[0]


def kernel_header(a, label):
    a.raw(".text")
    a.raw(f".globl {label}")
    a.raw(".p2align 8")
    a.raw(f".type {label},@function")
    a.raw(f"{label}:")


def kernel_desc(label, vgpr, agpr, sgpr=102):
    acc_off = ((vgpr + 3) // 4) * 4
    total = acc_off + agpr if agpr else vgpr
    return f""".amdhsa_kernel {label}
  .amdhsa_next_free_vgpr {total}
  .amdhsa_next_free_sgpr {sgpr}
  .amdhsa_accum_offset {acc_off}
  .amdhsa_group_segment_fixed_size 0
  .amdhsa_kernarg_size 80
  .amdhsa_user_sgpr_count 2
  .amdhsa_user_sgpr_kernarg_segment_ptr 1
  .amdhsa_system_sgpr_workgroup_id_x 1
.end_amdhsa_kernel
"""


def make_srd(a, sd, sptr, size, add_lo=None):
    if add_lo is None:
        a(f"s_mov_b32 s{sd}, s{sptr}")
        a(f"s_mov_b32 s{sd+1}, s{sptr+1}")
    else:
        a(f"s_add_u32 s{sd}, s{sptr}, {add_lo}")
        a(f"s_addc_u32 s{sd+1}, s{sptr+1}, 0")
    a(f"s_mov_b32 s{sd+2}, {size}")
    a(f"s_mov_b32 s{sd+3}, 0x00020000")


K1_R = 4
K1_BB = 0
K1_BSTR = 10240
K1_AB = K1_R * K1_BSTR
K1_ASTR = 18432
K1_WPH = K1_AB + K1_R * K1_ASTR
K1_LDS = K1_WPH + 16384
K1_PB = 0
PB_STR = 264
K1_VT = K1_PB + 128 * PB_STR
VT_STR = 272
K1_PKT = K1_VT + 2 * 32 * VT_STR
assert K1_PKT + 2 * 48 * VT_STR <= K1_WPH

NBF = 18
NBA = 7
NB1 = NBF + NBA


def k1_A_pos(row, col):
    b, c = divmod(col, 16)
    par = (row >> 3) & 1
    return row * 576 + ((b ^ par) * 16 + c) * 2


def k1_B_pos(row, a):
    seg, j = divmod(a, 36)
    col = 40 * seg + j
    ch, inb = divmod(col, 8)
    p, half = divmod(ch, 2)
    sw = (row & 3) | (((row >> 3) & 1) << 2)
    return row * 256 + ((p ^ sw) * 2 + half) * 16 + inb * 2


def check_k1_layout():
    worstA = worstB = 1
    for half2 in range(2):
        for b in range(NBF):
            addrs = []
            for l in range(64):
                g, i4 = divmod(l, 16)
                r, c = divmod(i4, 4)
                row = 8 * g + r + 4 * half2
                addrs.append(k1_A_pos(row, 16 * b + 4 * c))
            worstA = max(worstA, bank_conflicts_b64(addrs))
        for ab in range(NBA):
            addrs = []
            for l in range(64):
                g, i4 = divmod(l, 16)
                r, c = divmod(i4, 4)
                row = 8 * g + r + 4 * half2
                a0 = 16 * ab + 4 * c
                if a0 >= 108:
                    sw = (row & 3) | (((row >> 3) & 1) << 2)
                    addrs.append(row * 256 + ((7 ^ sw) * 2 + 1) * 16)
                else:
                    addrs.append(k1_B_pos(row, a0))
            worstB = max(worstB, bank_conflicts_b64(addrs))
    return worstA, worstB


def gen_k1(a, label):
    kernel_header(a, label)
    sX, sQ, sPH, sW1, sWS = 4, 6, 8, 10, 12
    SRD_X, SRD_W1, SRD_Q, SRD_ACT, SRD_PQ, SRD_KV, SRD_D4 = 16, 20, 24, 28, 32, 36, 40
    sMT, sNT, sWV = 44, 45, 46
    sSofA, sSofB, sM04, sStr4, sSof4, sInc4 = 47, 48, 49, 50, 51, 52
    sT0, sT1, sT2, sT3 = 53, 54, 55, 56
    sM0A, sM0B = 57, 58
    vLane = 0
    vL = 1
    vG, vTT = 2, 3
    vT0, vT1, vT2, vT3, vT4, vT5 = 4, 5, 6, 7, 8, 9
    vX0, vX1 = 10, 11
    vD = 12
    vAe, vAo = 19, 20
    vBt = 21
    vH = 39
    vS = 28
    vFR = 40
    NSLOT = 8
    vXF = 72
    vEP = 216
    NV = 256
    PD = 6

    def xf(tb, ks):
        return vXF + (tb * 18 + ks) * 4

    def acc(b, tb):
        return (b * 2 + tb) * 4
    ACC2 = NB1 * 8
    NA = ACC2 + 40

    a("s_load_dwordx2 s[4:5], s[0:1], %d" % KA_X)
    a("s_load_dwordx2 s[6:7], s[0:1], %d" % KA_WQKV)
    a("s_load_dwordx2 s[8:9], s[0:1], %d" % KA_WPHI)
    a("s_load_dwordx2 s[10:11], s[0:1], %d" % KA_W1)
    a("s_load_dwordx2 s[12:13], s[0:1], %d" % KA_WS)
    a("s_cmp_ge_u32 s2, 256")
    a(f"s_cbranch_scc1 L_{label}_end")
    a(f"s_lshr_b32 s{sMT}, s2, 4")
    a(f"s_and_b32 s{sNT}, s2, 15")
    a(f"v_and_b32 v{vL}, 63, v0")
    a(f"v_lshrrev_b32 v{vT0}, 6, v0")
    a(f"v_lshrrev_b32 v{vG}, 4, v{vL}")
    a(f"v_and_b32 v{vTT}, 15, v{vL}")
    a(f"v_readfirstlane_b32 s{sWV}, v{vT0}")
    a("s_waitcnt lgkmcnt(0)")
    make_srd(a, SRD_X, sX, S * D * 2)
    make_srd(a, SRD_W1, sW1, D * F * 2)
    make_srd(a, SRD_Q, sQ, D * 3 * D * 2)
    make_srd(a, SRD_ACT, sWS, ACT_SIZE)
    make_srd(a, SRD_PQ, sWS, PHIQ_SIZE, WS_PHIQ)
    make_srd(a, SRD_KV, sWS, KVP_SIZE, WS_KVP)
    a(f"s_lshl_b32 s{sT0}, s{sMT}, 7")
    a(f"s_lshl_b32 s{sT1}, s{sWV}, 5")
    a(f"s_add_u32 s{sT0}, s{sT0}, s{sT1}")
    a(f"v_add_u32 v{vT1}, s{sT0}, v{vTT}")
    a(f"v_mul_u32_u24 v{vX0}, 1152, v{vT1}")
    a(f"v_lshlrev_b32 v{vT2}, 4, v{vG}")
    a(f"v_add_u32 v{vX0}, v{vX0}, v{vT2}")
    a(f"v_add_u32 v{vX1}, {16*1152}, v{vX0}")
    for tb in range(2):
        for ks in range(18):
            a.vm_op(f"buffer_load_dwordx4 {vr(xf(tb,ks),4)}, v{vX0+tb}, s[{SRD_X}:{SRD_X+3}], 0 offen offset:{ks*64}", "x")

    mul36, sh36 = magic_div(36, 64 * 28)
    a(f"s_mul_i32 s{sT2}, s{sNT}, 576")
    a(f"s_mul_i32 s{sT3}, s{sNT}, 72")
    for i in range(5):
        a(f"s_lshl_b32 s{sT0}, s{sWV}, 6")
        a(f"s_add_u32 s{sT0}, s{sT0}, {256*i}")
        a(f"v_add_u32 v{vT0}, s{sT0}, v{vL}")
        a(f"v_mul_u32_u24 v{vT1}, {mul36}, v{vT0}")
        a(f"v_lshrrev_b32 v{vT1}, {sh36}, v{vT1}")
        a(f"v_mul_u32_u24 v{vT2}, 36, v{vT1}")
        a(f"v_sub_u32 v{vT2}, v{vT0}, v{vT2}")
        a(f"v_lshrrev_b32 v{vT3}, 1, v{vT2}")
        a(f"v_bfe_u32 v{vT4}, v{vT1}, 3, 1")
        a(f"v_xor_b32 v{vT3}, v{vT3}, v{vT4}")
        a(f"v_and_b32 v{vT2}, 1, v{vT2}")
        a(f"v_lshlrev_b32 v{vT3}, 5, v{vT3}")
        a(f"v_lshl_add_u32 v{vT3}, v{vT2}, 4, v{vT3}")
        a(f"v_mul_u32_u24 v{vT1}, 9216, v{vT1}")
        a(f"v_add3_u32 v{vD+i}, v{vT1}, v{vT3}, s{sT2}")
    for i in range(5, 7):
        a(f"s_lshl_b32 s{sT0}, s{sWV}, 6")
        a(f"s_add_u32 s{sT0}, s{sT0}, {256*(i-5)}")
        a(f"v_add_u32 v{vT0}, s{sT0}, v{vL}")
        a(f"v_lshrrev_b32 v{vT1}, 4, v{vT0}")
        a(f"v_and_b32 v{vT2}, 15, v{vT0}")
        a(f"v_lshrrev_b32 v{vT3}, 1, v{vT2}")
        a(f"v_and_b32 v{vT4}, 3, v{vT1}")
        a(f"v_bfe_u32 v{vT5}, v{vT1}, 3, 1")
        a(f"v_lshl_or_b32 v{vT4}, v{vT5}, 2, v{vT4}")
        a(f"v_xor_b32 v{vT3}, v{vT3}, v{vT4}")
        a(f"v_and_b32 v{vT2}, 1, v{vT2}")
        a(f"v_lshl_add_u32 v{vT3}, v{vT3}, 1, v{vT2}")
        a(f"v_mul_u32_u24 v{vT4}, 205, v{vT3}")
        a(f"v_lshrrev_b32 v{vT4}, 10, v{vT4}")
        a(f"v_mul_u32_u24 v{vT5}, 5, v{vT4}")
        a(f"v_sub_u32 v{vT5}, v{vT3}, v{vT5}")
        a(f"v_mul_u32_u24 v{vT4}, 1152, v{vT4}")
        a(f"v_lshl_add_u32 v{vT4}, v{vT5}, 4, v{vT4}")
        a(f"v_mul_u32_u24 v{vT1}, 3456, v{vT1}")
        a(f"v_add3_u32 v{vT1}, v{vT1}, v{vT4}, s{sT3}")
        a(f"v_cmp_eq_u32 vcc, 15, v{vT3}")
        a(f"v_mov_b32 v{vT4}, 0x80000000")
        a("s_nop 1")
        a(f"v_cndmask_b32 v{vD+i}, v{vT1}, v{vT4}, vcc")
    a(f"s_lshl_b32 s{sM0A}, s{sWV}, 10")
    a(f"s_add_u32 s{sM0A}, s{sM0A}, {K1_AB}")
    a(f"s_lshl_b32 s{sM0B}, s{sWV}, 10")
    a(f"s_add_u32 s{sM0B}, s{sM0B}, {K1_BB}")
    a(f"s_cmp_lt_u32 s{sWV}, 2")
    a(f"s_cselect_b32 s{SRD_D4+2}, s{SRD_W1+2}, 0")
    a(f"s_mov_b32 s{SRD_D4}, s{SRD_W1}")
    a(f"s_mov_b32 s{SRD_D4+1}, s{SRD_W1+1}")
    a(f"s_mov_b32 s{SRD_D4+3}, 0x00020000")
    a(f"s_mov_b32 s{sT0}, {K1_BSTR}")
    a(f"s_cselect_b32 s{sStr4}, {K1_ASTR}, s{sT0}")
    a(f"s_add_u32 s{sT0}, s{sM0A}, {16*1024}")
    a(f"s_lshl_b32 s{sT1}, s{sWV}, 10")
    a(f"s_add_u32 s{sT1}, s{sT1}, {K1_BB + 8192 - 2048}")
    a(f"s_cmp_lt_u32 s{sWV}, 2")
    a(f"s_cselect_b32 s{sM04}, s{sT0}, s{sT1}")
    a(f"s_mov_b32 s{sSofA}, 0")
    a(f"s_mov_b32 s{sSofB}, 0")

    def issue_stage(stage):
        r = stage % K1_R
        for i in range(7):
            if i < 4:
                a(f"s_add_u32 m0, s{sM0A}, {i*4096 + r*K1_ASTR}")
                a("s_nop 0")
                a.vm_op(f"buffer_load_dwordx4 v{vD+i}, s[{SRD_W1}:{SRD_W1+3}], s{sSofA} offen lds", ("st", stage))
            elif i == 4:
                a(f"s_mul_i32 s{sT0}, s{sStr4}, {r}")
                a(f"s_add_u32 m0, s{sM04}, s{sT0}")
                a("s_nop 0")
                a.vm_op(f"buffer_load_dwordx4 v{vD+i}, s[{SRD_D4}:{SRD_D4+3}], s{sSofA} offen lds", ("st", stage))
            else:
                a(f"s_add_u32 m0, s{sM0B}, {(i-5)*4096 + r*K1_BSTR}")
                a("s_nop 0")
                a.vm_op(f"buffer_load_dwordx4 v{vD+i}, s[{SRD_Q}:{SRD_Q+3}], s{sSofB} offen lds", ("st", stage))
        a(f"s_add_u32 s{sSofA}, s{sSofA}, {32*9216}")
        a(f"s_add_u32 s{sSofB}, s{sSofB}, {32*3456}")

    issue_stage(0)
    issue_stage(1)

    a(f"v_lshrrev_b32 v{vT0}, 2, v{vTT}")
    a(f"v_lshl_add_u32 v{vT0}, v{vG}, 3, v{vT0}")
    a(f"v_and_b32 v{vT1}, 3, v{vTT}")
    a(f"v_and_b32 v{vT2}, 1, v{vG}")
    a(f"v_mul_u32_u24 v{vT3}, 576, v{vT0}")
    a(f"v_lshl_add_u32 v{vT3}, v{vT1}, 3, v{vT3}")
    a(f"v_add_u32 v{vT3}, {K1_AB}, v{vT3}")
    a(f"v_lshlrev_b32 v{vT4}, 5, v{vT2}")
    a(f"v_add_u32 v{vAe}, v{vT3}, v{vT4}")
    a(f"v_sub_u32 v{vAo}, v{vT3}, v{vT4}")
    mulb, shb = magic_div(36, 128)
    a(f"v_and_b32 v{vT3}, 3, v{vT0}")
    a(f"v_lshl_or_b32 v{vT3}, v{vT2}, 2, v{vT3}")
    for ab in range(NBA):
        a(f"v_lshlrev_b32 v{vT4}, 2, v{vT1}")
        a(f"v_add_u32 v{vT4}, {16*ab}, v{vT4}")
        a(f"v_mul_u32_u24 v{vT5}, {mulb}, v{vT4}")
        a(f"v_lshrrev_b32 v{vT5}, {shb}, v{vT5}")
        a(f"v_lshlrev_b32 v{vS}, 2, v{vT5}")
        a(f"v_add_u32 v{vT4}, v{vT4}, v{vS}")
        a(f"v_lshrrev_b32 v{vT5}, 4, v{vT4}")
        a(f"v_xor_b32 v{vT5}, v{vT5}, v{vT3}")
        a(f"v_and_b32 v{vT4}, 15, v{vT4}")
        a(f"v_lshlrev_b32 v{vT4}, 1, v{vT4}")
        a(f"v_lshl_add_u32 v{vT4}, v{vT5}, 5, v{vT4}")
        a(f"v_lshl_add_u32 v{vBt+ab}, v{vT0}, 8, v{vT4}")
    assert K1_BB == 0
    a(f"v_and_b32 v{vT0}, 1, v{vG}")
    a(f"v_lshrrev_b32 v{vT1}, 1, v{vG}")
    a(f"v_lshl_or_b32 v{vT0}, v{vT0}, 1, v{vT1}")
    a(f"v_lshl_add_u32 v{vT0}, v{vT0}, 4, v{vTT}")
    a(f"v_lshlrev_b32 v{vH}, 4, v{vT0}")
    a(f"s_lshl_b32 s{sT0}, s{sMT}, 3")
    a(f"s_lshl_b32 s{sT1}, s{sWV}, 1")
    a(f"s_add_u32 s{sT0}, s{sT0}, s{sT1}")
    a(f"s_mul_i32 s{sT0}, s{sT0}, {ACT_KS*1024}")
    a(f"s_mul_i32 s{sT1}, s{sNT}, {9*1024}")
    a(f"s_add_u32 s{sT0}, s{sT0}, s{sT1}")
    a(f"s_add_u32 s{sT0}, s{sT0}, {18*1024}")
    a(f"v_add_u32 v{vH}, s{sT0}, v{vH}")

    a(f"v_lshlrev_b32 v{vT0}, 4, v0")
    a(f"v_add_u32 v{vT0}, {K1_WPH}, v{vT0}")
    a(f"v_mov_b32 v{vS}, 0")
    a(f"v_mov_b32 v{vS+1}, 0")
    a(f"v_mov_b32 v{vS+2}, 0")
    a(f"v_mov_b32 v{vS+3}, 0")
    for i in range(4):
        a.lg_op(f"ds_write_b128 v{vT0}, {vr(vS,4)} offset:{i*4096}", "z")
    m324, s324 = magic_div(324, 1536)
    m18, s18 = magic_div(18, 324)
    a(f"s_mul_i32 s{sT0}, s{sNT}, {2*324*2}")
    a(f"s_add_u32 s{sT1}, s{sPH}, s{sT0}")
    a(f"s_addc_u32 s{sT2}, s{sPH+1}, 0")
    a(f"s_mov_b32 s60, s{sT1}")
    a(f"s_mov_b32 s61, s{sT2}")
    a(f"s_mov_b32 s62, {2*324*2}")
    a(f"s_mov_b32 s63, 0x00020000")
    vW = vEP
    for i in range(6):
        a(f"v_add_u32 v{vT0}, {256*i}, v0")
        a(f"v_mul_u32_u24 v{vT1}, {m324}, v{vT0}")
        a(f"v_lshrrev_b32 v{vT1}, {s324}, v{vT1}")
        a(f"v_mul_u32_u24 v{vT2}, 324, v{vT1}")
        a(f"v_sub_u32 v{vT2}, v{vT0}, v{vT2}")
        a(f"v_mul_u32_u24 v{vT3}, {m18}, v{vT2}")
        a(f"v_lshrrev_b32 v{vT3}, {s18}, v{vT3}")
        a(f"v_mul_u32_u24 v{vT4}, 18, v{vT3}")
        a(f"v_sub_u32 v{vT4}, v{vT2}, v{vT4}")
        a(f"v_and_b32 v{vT5}, 1, v{vT1}")
        a(f"v_mul_u32_u24 v{vT5}, 324, v{vT5}")
        a(f"v_add_lshl_u32 v{vT5}, v{vT5}, v{vT2}, 1")
        a(f"v_cmp_gt_u32 vcc, 1296, v{vT0}")
        a(f"v_mov_b32 v{vS}, 0x80000000")
        a("s_nop 1")
        a(f"v_cndmask_b32 v{vT5}, v{vS}, v{vT5}, vcc")
        a.vm_op(f"buffer_load_ushort v{vW+i}, v{vT5}, s[60:63], 0 offen", "wp")
        a(f"v_mul_u32_u24 v{vT1}, 18, v{vT1}")
        a(f"v_add_u32 v{vT4}, v{vT4}, v{vT1}")
        a(f"v_add_u32 v{vT3}, v{vT3}, v{vT1}")
        a(f"v_mul_u32_u24 v{vT4}, 192, v{vT4}")
        a(f"v_lshl_add_u32 v{vT4}, v{vT3}, 1, v{vT4}")
        a(f"v_add_u32 v{vT4}, {K1_WPH}, v{vT4}")
        a(f"v_mov_b32 v{vS}, {K1_WPH + 16384 - 4}")
        a("s_nop 1")
        a(f"v_cndmask_b32 v{vW+6+i}, v{vS}, v{vT4}, vcc")
    a.wait_lg("z")
    a("s_barrier")
    a.wait_vm("wp")
    for i in range(6):
        a.lg_op(f"ds_write_b16 v{vW+6+i}, v{vW+i}", "wps")

    a.wait_vm("x")
    vOne = vS
    a(f"v_mov_b32 v{vOne}, 0x3f803f80")
    vSum = vS + 1
    for k in range(8):
        a(f"v_mov_b32 v{vSum+k}, 0")
    for tb in range(2):
        for ks in range(18):
            for j in range(4):
                r = xf(tb, ks) + j
                acs = vSum + tb * 4 + (j & 1) * 2
                a(f"v_dot2_f32_bf16 v{acs}, v{r}, v{vOne}, v{acs}")
                a(f"v_dot2_f32_bf16 v{acs+1}, v{r}, v{r}, v{acs+1}")
    a("s_nop 3")
    for tb in range(2):
        for k in range(2):
            a(f"v_add_f32 v{vSum+tb*4+k}, v{vSum+tb*4+k}, v{vSum+tb*4+2+k}")
    vals = [vSum + 0, vSum + 1, vSum + 4, vSum + 5]
    tmp = vSum + 2
    for op in ("v_permlane16_swap_b32", "v_permlane32_swap_b32"):
        for v in vals:
            a(f"v_mov_b32 v{tmp}, v{v}")
            a("s_nop 1")
            a(f"{op} v{v}, v{tmp}")
            a("s_nop 1")
            a(f"v_add_f32 v{v}, v{v}, v{tmp}")
    vRs = [vEP + 12, vEP + 13]
    vNm = [vEP + 14, vEP + 15]

    def bf16r(dst, src):
        a(f"v_cvt_pk_bf16_f32 v{dst}, v{src}, v{src}")
        a(f"v_lshlrev_b32 v{dst}, 16, v{dst}")
    for tb in range(2):
        s_, q_ = vals[tb * 2], vals[tb * 2 + 1]
        a(f"v_mul_f32 v{s_}, {f32hex(1.0/576)}, v{s_}")
        a(f"v_mul_f32 v{q_}, {f32hex(1.0/576)}, v{q_}")
        a(f"v_fma_f32 v{q_}, -v{s_}, v{s_}, v{q_}")
        a(f"v_max_f32 v{q_}, 0, v{q_}")
        bf16r(s_, s_)
        bf16r(q_, q_)
        a(f"v_add_f32 v{q_}, {f32hex(1e-5)}, v{q_}")
        bf16r(q_, q_)
        a(f"v_sqrt_f32 v{q_}, v{q_}")
        a("s_nop 0")
        bf16r(q_, q_)
        a(f"v_rcp_f32 v{vRs[tb]}, v{q_}")
        a("s_nop 0")
        a(f"v_mul_f32 v{vNm[tb]}, v{s_}, v{vRs[tb]}")
        a(f"v_sub_f32 v{vNm[tb]}, 0, v{vNm[tb]}")
    for tb in range(2):
        for ks in range(18):
            for j in range(4):
                r = xf(tb, ks) + j
                t0, t1 = vT0 + (j & 1) * 2, vT1 + (j & 1) * 2
                a(f"v_lshlrev_b32 v{t0}, 16, v{r}")
                a(f"v_and_b32 v{t1}, 0xffff0000, v{r}")
                a(f"v_fma_f32 v{t0}, v{t0}, v{vRs[tb]}, v{vNm[tb]}")
                a(f"v_fma_f32 v{t1}, v{t1}, v{vRs[tb]}, v{vNm[tb]}")
                a(f"v_cvt_pk_bf16_f32 v{r}, v{t0}, v{t1}")

    total = 18 * NB1

    def frag_reads(i):
        ks, b = divmod(i, NB1)
        r = ks % K1_R
        dst = vFR + (i % NSLOT) * 4
        if b < NBF:
            va = vAe if b % 2 == 0 else vAo
            off = r * K1_ASTR + b * 32
            second = 4 * 576
        else:
            va = vBt + (b - NBF)
            off = r * K1_BSTR
            second = 4 * 256
        a.lg_op(f"ds_read_b64_tr_b16 {vr(dst,2)}, v{va} offset:{off}", ("fr", i))
        a.lg_op(f"ds_read_b64_tr_b16 {vr(dst+2,2)}, v{va} offset:{off+second}", ("fr", i))

    def sync_stage(ks):
        a.wait_vm(("st", ks))
        a("s_barrier")
        if ks + 2 < 18:
            issue_stage(ks + 2)

    a.wait_lg("wps")
    sync_stage(0)
    for i in range(PD):
        frag_reads(i)
    for i in range(total):
        nx = i + PD
        if nx < total:
            ks2, b2 = divmod(nx, NB1)
            if b2 == 0:
                sync_stage(ks2)
            frag_reads(nx)
        ks, b = divmod(i, NB1)
        a.wait_lg(("fr", i))
        fr = vFR + (i % NSLOT) * 4
        for tb in range(2):
            c = "0" if ks == 0 else ar(acc(b, tb), 4)
            a(f"v_mfma_f32_16x16x32_bf16 {ar(acc(b,tb),4)}, {vr(fr,4)}, {vr(xf(tb,ks),4)}, {c}")
    a.nop(10)

    vE = vXF
    nset = 0
    for tb in range(2):
        for pr in range(9):
            base = vE + (nset % 6) * 20
            nset += 1
            xs = base
            ts = base + 8
            pk = base + 16
            for k in range(8):
                src = acc(2 * pr + k // 4, tb) + (k % 4)
                a(f"v_accvgpr_read_b32 v{xs+k}, a{src}")
            for k in range(8):
                a(f"v_mul_f32 v{ts+k}, {f32hex(-LOG2E)}, v{xs+k}")
            for k in range(8):
                a(f"v_exp_f32 v{ts+k}, v{ts+k}")
            for k in range(8):
                a(f"v_add_f32 v{ts+k}, 1.0, v{ts+k}")
            for k in range(8):
                a(f"v_rcp_f32 v{ts+k}, v{ts+k}")
            for k in range(8):
                a(f"v_mul_f32 v{xs+k}, v{xs+k}, v{ts+k}")
            for k in range(4):
                a(f"v_cvt_pk_bf16_f32 v{pk+k}, v{xs+2*k}, v{xs+2*k+1}")
            a("s_nop 1")
            a(f"v_permlane16_swap_b32 v{pk}, v{pk+2}")
            a(f"v_permlane16_swap_b32 v{pk+1}, v{pk+3}")
            a(f"s_mov_b32 s{sT0}, {tb*ACT_KS*1024 + pr*1024}")
            a("s_nop 0")
            a.vm_op(f"buffer_store_dwordx4 {vr(pk,4)}, v{vH}, s[{SRD_ACT}:{SRD_ACT+3}], s{sT0} offen", "hs")

    vB2 = vEP
    vV = vEP + 24
    vTmp = vE
    for tb in range(2):
        for pk2 in range(3):
            dst = vB2 + (tb * 3 + pk2) * 4
            for k in range(8):
                src = acc(NBF + 2 * pk2 + k // 4, tb) + (k % 4)
                a(f"v_accvgpr_read_b32 v{vTmp+k}, a{src}")
            for k in range(4):
                a(f"v_cvt_pk_bf16_f32 v{dst+k}, v{vTmp+2*k}, v{vTmp+2*k+1}")
            if pk2 == 2:
                for k in range(4):
                    a(f"v_mov_b32 v{vV + tb*6 + k}, v{dst+k}")
            a("s_nop 1")
            a(f"v_permlane16_swap_b32 v{dst}, v{dst+2}")
            a(f"v_permlane16_swap_b32 v{dst+1}, v{dst+3}")
        for k in range(4):
            src = acc(NBF + 6, tb) + k
            a(f"v_accvgpr_read_b32 v{vTmp+k}, a{src}")
        for k in range(2):
            a(f"v_cvt_pk_bf16_f32 v{vV + tb*6 + 4 + k}, v{vTmp+2*k}, v{vTmp+2*k+1}")
    nz = [(0, 0), (1, 0), (1, 1), (2, 0), (2, 1), (3, 1), (3, 2), (4, 1), (4, 2)]
    a(f"v_and_b32 v{vT0}, 1, v{vG}")
    a(f"v_lshrrev_b32 v{vT1}, 1, v{vG}")
    a(f"v_lshl_or_b32 v{vT0}, v{vT0}, 1, v{vT1}")
    a(f"v_lshlrev_b32 v{vT0}, 4, v{vT0}")
    a(f"v_mul_u32_u24 v{vT1}, 192, v{vTT}")
    a(f"v_add_u32 v{vT0}, v{vT0}, v{vT1}")
    a(f"v_add_u32 v{vT0}, {K1_WPH}, v{vT0}")
    vA2 = vE + 96
    for n, (mb, k2) in enumerate(nz):
        dst = vA2 + n * 4
        a.lg_op(f"ds_read_b128 {vr(dst,4)}, v{vT0} offset:{mb*16*192 + k2*64}", ("a2", n))
        if n >= 3 or n == len(nz) - 1:
            pass
    first = {}
    for n, (mb, k2) in enumerate(nz):
        if n == 8:
            pass
        a.wait_lg(("a2", n))
        src = vA2 + n * 4
        for tb in range(2):
            d = ACC2 + (mb * 2 + tb) * 4
            c = ar(d, 4) if (mb, tb) in first else "0"
            first[(mb, tb)] = True
            a(f"v_mfma_f32_16x16x32_bf16 {ar(d,4)}, {vr(src,4)}, {vr(vB2+(tb*3+k2)*4,4)}, {c}")
        if n == 7:
            pass
    a.nop(10)
    a("s_barrier")
    a(f"s_lshl_b32 s{sT0}, s{sWV}, 5")
    a(f"v_add_u32 v{vT0}, s{sT0}, v{vTT}")
    a(f"v_mul_u32_u24 v{vT0}, {PB_STR}, v{vT0}")
    a(f"v_lshl_add_u32 v{vT0}, v{vG}, 3, v{vT0}")
    a(f"v_add_u32 v{vT0}, {K1_PB}, v{vT0}")
    for tb in range(2):
        for mb in range(5):
            d = ACC2 + (mb * 2 + tb) * 4
            for k in range(4):
                a(f"v_accvgpr_read_b32 v{vTmp+k}, a{d+k}")
            a(f"v_cvt_pk_bf16_f32 v{vTmp+4}, v{vTmp}, v{vTmp+1}")
            a(f"v_cvt_pk_bf16_f32 v{vTmp+5}, v{vTmp+2}, v{vTmp+3}")
            a.lg_op(f"ds_write_b64 v{vT0}, {vr(vTmp+4,2)} offset:{tb*16*PB_STR + mb*32}", "pb")
        for k3 in range(3):
            a.lg_op(f"ds_write_b64 v{vT0}, {vr(vV + tb*6 + 2*k3, 2)} offset:{tb*16*PB_STR + 160 + k3*32}", "pb")
    a.wait_lg("pb")
    a("s_barrier")
    a(f"v_and_b32 v{vT0}, 127, v0")
    a(f"v_lshrrev_b32 v{vT1}, 7, v0")
    a(f"v_mul_u32_u24 v{vT2}, {PB_STR}, v{vT0}")
    a(f"v_mul_u32_u24 v{vT3}, 36, v{vT1}")
    a(f"v_add_u32 v{vT2}, v{vT2}, v{vT3}")
    a(f"v_add_u32 v{vT2}, {K1_PB}, v{vT2}")
    vP = vE
    for k in range(9):
        a.lg_op(f"ds_read_b32 v{vP+k}, v{vT2} offset:{4*k}", "pr")
        a.lg_op(f"ds_read_b32 v{vP+9+k}, v{vT2} offset:{72+4*k}", "pr")
        a.lg_op(f"ds_read_b32 v{vP+18+k}, v{vT2} offset:{160+16+4*k}", "pr")
    a(f"v_lshlrev_b32 v{vT3}, 1, v{vT0}")
    a(f"v_mul_u32_u24 v{vT4}, {32*VT_STR}, v{vT1}")
    a(f"v_add_u32 v{vT4}, v{vT4}, v{vT3}")
    a(f"v_add_u32 v{vT4}, {K1_VT}, v{vT4}")
    a(f"v_mul_u32_u24 v{vT5}, {48*VT_STR}, v{vT1}")
    a(f"v_add_u32 v{vT5}, v{vT5}, v{vT3}")
    a(f"v_add_u32 v{vT5}, {K1_PKT}, v{vT5}")
    a(f"s_lshl_b32 s{sT0}, s{sNT}, 1")
    a(f"v_add_u32 v{vS}, s{sT0}, v{vT1}")
    a(f"v_lshlrev_b32 v{vS}, 11, v{vS}")
    a(f"s_lshl_b32 s{sT0}, s{sMT}, 7")
    a(f"v_add3_u32 v{vS}, v{vS}, v{vT0}, s{sT0}")
    a(f"v_mul_u32_u24 v{vS}, 72, v{vS}")
    a.wait_lg("pr")
    for k in range(9):
        a.lg_op(f"ds_write_b16 v{vT4}, v{vP+18+k} offset:{(2*k)*VT_STR}", "vt")
        a.lg_op(f"ds_write_b16_d16_hi v{vT4}, v{vP+18+k} offset:{(2*k+1)*VT_STR}", "vt")
    a(f"v_mov_b32 v{vS+1}, 0x3f80")
    a.lg_op(f"ds_write_b16 v{vT4}, v{vS+1} offset:{18*VT_STR}", "vt")

    def softmax_pair(src, out):
        f = vE + 64
        e = vE + 84
        mx, mn, sp, sm = vE + 124, vE + 125, vE + 126, vE + 127
        for k in range(9):
            a(f"v_lshlrev_b32 v{f+2*k}, 16, v{src+k}")
            a(f"v_and_b32 v{f+2*k+1}, 0xffff0000, v{src+k}")
        a(f"v_max3_f32 v{mx}, v{f}, v{f+1}, v{f+2}")
        a(f"v_min3_f32 v{mn}, v{f}, v{f+1}, v{f+2}")
        for k in range(3, 18, 2):
            if k + 1 < 18:
                a(f"v_max3_f32 v{mx}, v{mx}, v{f+k}, v{f+k+1}")
                a(f"v_min3_f32 v{mn}, v{mn}, v{f+k}, v{f+k+1}")
            else:
                a(f"v_max_f32 v{mx}, v{mx}, v{f+k}")
                a(f"v_min_f32 v{mn}, v{mn}, v{f+k}")
        a(f"v_mul_f32 v{mx}, {f32hex(-LOG2E)}, v{mx}")
        a(f"v_mul_f32 v{mn}, {f32hex(LOG2E)}, v{mn}")
        a(f"v_mov_b32 v{sm}, {f32hex(LOG2E)}")
        for k in range(18):
            a(f"v_fma_f32 v{e+k}, v{f+k}, v{sm}, v{mx}")
            a(f"v_fma_f32 v{e+18+k}, -v{f+k}, v{sm}, v{mn}")
        for k in range(36):
            a(f"v_exp_f32 v{e+k}, v{e+k}")
        a("s_nop 0")
        a(f"v_add_f32 v{sp}, v{e}, v{e+1}")
        a(f"v_add_f32 v{sm}, v{e+18}, v{e+19}")
        for k in range(2, 18):
            a(f"v_add_f32 v{sp}, v{sp}, v{e+k}")
            a(f"v_add_f32 v{sm}, v{sm}, v{e+18+k}")
        a(f"v_rcp_f32 v{sp}, v{sp}")
        a(f"v_rcp_f32 v{sm}, v{sm}")
        a("s_nop 0")
        for k in range(18):
            a(f"v_mul_f32 v{e+k}, v{e+k}, v{sp}")
            a(f"v_mul_f32 v{e+18+k}, v{e+18+k}, v{sm}")
        for k in range(18):
            a(f"v_cvt_pk_bf16_f32 v{out+k}, v{e+2*k}, v{e+2*k+1}")

    vO = vE + 32
    softmax_pair(vP, vO)
    for k in range(9):
        a.vm_op(f"buffer_store_dwordx2 {vr(vO+2*k,2)}, v{vS}, s[{SRD_PQ}:{SRD_PQ+3}], 0 offen offset:{8*k}", "pq")
    a("s_nop 1")
    softmax_pair(vP + 9, vO)
    for k in range(18):
        a.lg_op(f"ds_write_b16 v{vT5}, v{vO+k} offset:{(2*k)*VT_STR}", "vt")
        a.lg_op(f"ds_write_b16_d16_hi v{vT5}, v{vO+k} offset:{(2*k+1)*VT_STR}", "vt")
    a.wait_lg("vt")
    a("s_barrier")
    import os
    if os.environ.get("K1DUMP"):
        a("s_cmp_lg_u32 s2, 0")
        a("s_cbranch_scc1 L_nodump")
        a(f"s_add_u32 s60, s{sWS}, 0x8000000")
        a(f"s_addc_u32 s61, s{sWS+1}, 0")
        a("s_mov_b32 s62, 0x100000")
        a("s_mov_b32 s63, 0x00020000")
        a(f"v_lshlrev_b32 v{vT0}, 4, v0")
        for i in range(19):
            a(f"v_add_u32 v{vT1}, {i*4096}, v{vT0}")
            a(f"ds_read_b128 {vr(vE+4*(i%4),4)}, v{vT1}")
            a("s_waitcnt lgkmcnt(0)")
            a(f"s_mov_b32 s{sT0}, {i*4096}")
            a(f"buffer_store_dwordx4 {vr(vE+4*(i%4),4)}, v{vT0}, s[60:63], s{sT0} offen")
        a("s_waitcnt vmcnt(0)")
        a.label("L_nodump")
    a(f"s_lshr_b32 s{sT0}, s{sWV}, 1")
    a(f"s_and_b32 s{sT1}, s{sWV}, 1")
    a(f"v_mul_u32_u24 v{vT0}, {VT_STR}, v{vTT}")
    a(f"v_lshl_add_u32 v{vT0}, v{vG}, 4, v{vT0}")
    a(f"s_mul_i32 s{sT2}, s{sT0}, {48*VT_STR}")
    a(f"s_add_u32 s{sT2}, s{sT2}, {K1_PKT}")
    a(f"v_add_u32 v{vT1}, s{sT2}, v{vT0}")
    a(f"s_mul_i32 s{sT2}, s{sT0}, {32*VT_STR}")
    a(f"s_mul_i32 s{sT3}, s{sT1}, {16*VT_STR}")
    a(f"s_add_u32 s{sT2}, s{sT2}, s{sT3}")
    a(f"s_add_u32 s{sT2}, s{sT2}, {K1_VT}")
    a(f"v_add_u32 v{vT2}, s{sT2}, v{vT0}")
    vKA = vE
    vKB = vE + 48
    for k4 in range(4):
        a.lg_op(f"ds_read_b128 {vr(vKB+4*k4,4)}, v{vT2} offset:{k4*64}", ("kb", k4))
        for mb in range(3):
            a.lg_op(f"ds_read_b128 {vr(vKA+(k4*3+mb)*4,4)}, v{vT1} offset:{mb*16*VT_STR + k4*64}", ("ka", k4))
    for k4 in range(4):
        a.wait_lg(("ka", k4))
        for mb in range(3):
            c = "0" if k4 == 0 else ar(ACC2 + mb * 4, 4)
            a(f"v_mfma_f32_16x16x32_bf16 {ar(ACC2+mb*4,4)}, {vr(vKA+(k4*3+mb)*4,4)}, {vr(vKB+4*k4,4)}, {c}")
    a.nop(10)
    a(f"s_lshl_b32 s{sT2}, s{sNT}, 1")
    a(f"s_add_u32 s{sT2}, s{sT2}, s{sT0}")
    a(f"s_lshl_b32 s{sT3}, s{sMT}, 5")
    a(f"s_add_u32 s{sT2}, s{sT2}, s{sT3}")
    a(f"s_mul_i32 s{sT2}, s{sT2}, {48*32*4}")
    a(f"s_lshl_b32 s{sT3}, s{sT1}, 6")
    a(f"s_add_u32 s{sT2}, s{sT2}, s{sT3}")
    a(f"v_lshlrev_b32 v{vT0}, 2, v{vTT}")
    a(f"v_lshl_add_u32 v{vT0}, v{vG}, 9, v{vT0}")
    a(f"v_add_u32 v{vT0}, s{sT2}, v{vT0}")
    for mb in range(3):
        a(f"s_mov_b32 s{sT3}, {mb*2048}")
        for i in range(4):
            a.vm_op(f"buffer_store_dword a{ACC2+mb*4+i}, v{vT0}, s[{SRD_KV}:{SRD_KV+3}], s{sT3} offen offset:{i*128}", "kv")
    a.label(f"L_{label}_end")
    a("s_endpgm")
    return NV, NA, K1_LDS


def build():
    from gen_rest import gen_k2, gen_k3, gen_k4
    body = Asm()
    descs = []
    launches = []
    for gen, label, grid, block in (
        (gen_k1, "k1_ln_gemm1_kernel", 256, 256),
        (gen_k2, "k2_attn_out_kernel", 256, 256),
        (gen_k3, "k3_gemm2_kernel", 256, 256),
        (gen_k4, "k4_reduce_kernel", 576, 256),
    ):
        nv, na, lds = gen(body, label)
        descs.append(kernel_desc(label, nv, na))
        launches.append(f"; @launch kernel={label} grid=({grid},1,1) block=({block},1,1) lds={lds}")
    hdr = open("cdna_kernels/" + NAME + ".s.ref").read().split("; Override launch")[0]
    out = hdr + "\n".join(launches) + "\n"
    out += '.amdgcn_target "amdgcn-amd-amdhsa--gfx950"\n'
    out += body.text()
    out += '.section .rodata,"a"\n.p2align 6\n'
    out += "".join(".p2align 6\n" + d for d in descs)
    return out


if __name__ == "__main__":
    print("k1 layout conflicts (A,B):", check_k1_layout())
    txt = build()
    open("cdna_kernels/" + NAME + ".s", "w").write(txt)
    print("written", len(txt), "bytes")
```

```python
from asmlib import Asm, vr, ar, sr, magic_div, bank_conflicts_b64
from gen import (kernel_header, make_srd, f32hex, S, D, F, H, stamp, stamps_out,
                 KA_X, KA_WQKV, KA_WPHI, KA_WO, KA_W1, KA_W2, KA_OUT, KA_WS,
                 ACT_KS, WS_ACT, ACT_SIZE, WS_PHIQ, PHIQ_SIZE, WS_KVP, KVP_SIZE, WS_PART, PART_SIZE)


def gen_k2(a, label):
    kernel_header(a, label)
    sWS = 4
    SRD_ACT, SRD_PQ, SRD_KV = 8, 12, 16
    sH, sC, sT0, sT1 = 20, 21, 22, 23
    a("s_load_dwordx2 s[4:5], s[0:1], %d" % KA_WS)
    a("s_cmp_ge_u32 s2, 256")
    a(f"s_cbranch_scc1 L_{label}_end")
    a(f"s_and_b32 s{sH}, s2, 31")
    a(f"s_lshr_b32 s{sC}, s2, 5")
    a("s_waitcnt lgkmcnt(0)")
    make_srd(a, SRD_ACT, sWS, ACT_SIZE)
    make_srd(a, SRD_PQ, sWS, PHIQ_SIZE, WS_PHIQ)
    make_srd(a, SRD_KV, sWS, KVP_SIZE, WS_KVP)
    vT, vA, vQ = 1, 2, 3
    vPQ = 4
    vKV = 24
    vAcc = 120
    a(f"s_lshl_b32 s{sT0}, s{sC}, 8")
    a(f"v_add_u32 v{vT}, s{sT0}, v0")
    a(f"s_lshl_b32 s{sT1}, s{sH}, 11")
    a(f"v_add_u32 v{vQ}, s{sT1}, v{vT}")
    a(f"v_mul_u32_u24 v{vQ}, 72, v{vQ}")
    for k in range(9):
        a.vm_op(f"buffer_load_dwordx2 {vr(vPQ+2*k,2)}, v{vQ}, s[{SRD_PQ}:{SRD_PQ+3}], 0 offen offset:{8*k}", "pq")
    a(f"v_lshlrev_b32 v{vA}, 2, v0")
    vA2 = 22
    a(f"v_add_u32 v{vA2}, 4096, v{vA}")
    a(f"s_mul_i32 s{sT0}, s{sH}, 6144")
    def kv_issue(mt):
        for i in range(6):
            va = vA if i < 4 else vA2
            a.vm_op(f"buffer_load_dword v{vKV+mt*6+i}, v{va}, s[{SRD_KV}:{SRD_KV+3}], s{sT0} offen offset:{(i%4)*1024}", ("kv", mt))
        a(f"s_add_u32 s{sT0}, s{sT0}, {32*6144}")
    for mt in range(8):
        kv_issue(mt)
    for mt in range(16):
        if mt + 8 < 16:
            kv_issue(mt + 8)
        a.wait_vm(("kv", mt))
        for i in range(6):
            if mt == 0:
                a(f"v_mov_b32 v{vAcc+i}, v{vKV+i}")
            else:
                a(f"v_add_f32 v{vAcc+i}, v{vAcc+i}, v{vKV+mt*6+i}")
    for i in range(6):
        a.lg_op(f"ds_write_b32 v{vA}, v{vAcc+i} offset:{i*1024}", "kw")
    vF = 24
    a.wait_vm("pq")
    for k in range(18):
        a(f"v_lshlrev_b32 v{vF+2*k}, 16, v{vPQ+k}")
        a(f"v_and_b32 v{vF+2*k+1}, 0xffff0000, v{vPQ+k}")
    vNum = 64
    for d in range(19):
        a(f"v_mov_b32 v{vNum+d}, 0")
    a(f"v_mov_b32 v{vQ}, 0")
    a.wait_lg("kw")
    a("s_barrier")
    vR = 88
    for f in range(36):
        rb = vR + (f % 2) * 20
        for c in range(5):
            a.lg_op(f"ds_read_b128 {vr(rb+4*c,4)}, v{vQ} offset:{f*128 + 16*c}", ("row", f))
        if f >= 1:
            pb = vR + ((f - 1) % 2) * 20
            a.wait_lg(("row", f - 1))
            for d in range(19):
                a(f"v_fmac_f32 v{vNum+d}, v{vF+f-1}, v{pb+d}")
    a.wait_lg(("row", 35))
    for d in range(19):
        a(f"v_fmac_f32 v{vNum+d}, v{vF+35}, v{vR+20+d}")
    a(f"v_add_f32 v{vNum+18}, {f32hex(1e-6)}, v{vNum+18}")
    a(f"v_rcp_f32 v{vNum+18}, v{vNum+18}")
    a("s_nop 0")
    for d in range(18):
        a(f"v_mul_f32 v{vNum+d}, v{vNum+d}, v{vNum+18}")
    vO = 4
    for p in range(9):
        a(f"v_cvt_pk_bf16_f32 v{vO+p}, v{vNum+2*p}, v{vNum+2*p+1}")
    a(f"v_lshrrev_b32 v{vA}, 4, v{vT}")
    a(f"s_mov_b32 s{sT0}, {ACT_KS*1024}")
    a(f"v_mul_lo_u32 v{vA}, v{vA}, s{sT0}")
    a(f"v_and_b32 v{vQ}, 15, v{vT}")
    a(f"v_lshl_add_u32 v{vA}, v{vQ}, 4, v{vA}")
    a(f"s_mul_i32 s{sT1}, s{sH}, 18")
    for p in range(9):
        a(f"s_add_u32 s{sT0}, s{sT1}, {2*p}")
        a(f"s_lshr_b32 s24, s{sT0}, 5")
        a(f"s_lshl_b32 s24, s24, 10")
        a(f"s_bfe_u32 s25, s{sT0}, 0x20003")
        a(f"s_lshl_b32 s25, s25, 8")
        a(f"s_add_u32 s24, s24, s25")
        a(f"s_and_b32 s25, s{sT0}, 7")
        a(f"s_lshl_b32 s25, s25, 1")
        a(f"s_add_u32 s24, s24, s25")
        a.vm_op(f"buffer_store_dword v{vO+p}, v{vA}, s[{SRD_ACT}:{SRD_ACT+3}], s24 offen", "os")
    a.label(f"L_{label}_end")
    a("s_endpgm")
    return 128, 0, 6144


K3_R = 6
K3_STR = 20480
K3_SPLITS = [(0, 42), (42, 82), (82, 122), (122, 162)]


def k3_pos(row, col):
    b, c = divmod(col, 16)
    par = (row >> 3) & 1
    return row * 320 + ((b ^ par) * 16 + c) * 2


def check_k3_layout():
    worst = 1
    for half2 in range(2):
        for b in range(9):
            addrs = []
            for l in range(64):
                g, i4 = divmod(l, 16)
                r, c = divmod(i4, 4)
                row = 8 * g + r + 4 * half2
                addrs.append(k3_pos(row, 16 * b + 4 * c))
            worst = max(worst, bank_conflicts_b64(addrs))
    return worst


def gen_k3(a, label):
    kernel_header(a, label)
    sWO, sW2, sWS = 4, 6, 8
    SRD_WO, SRD_W2, SRD_ACT, SRD_PT = 12, 16, 20, 24
    sS, sMT, sNT, sWV = 28, 29, 30, 31
    sT0, sT1, sT2, sSof, sM0 = 32, 33, 34, 35, 36
    vL, vG, vTT = 1, 2, 3
    vT0, vT1, vT2, vT3, vT4 = 4, 5, 6, 7, 8
    vD = 9
    vA = 14
    vAct = 18
    vP = 19
    vFR = 24
    NSLOT = 8
    vAF = 56
    ADEPTH = 8
    AD = 6
    PD = 6
    NV = 120

    def acc(b, tb):
        return (b * 2 + tb) * 4

    a("s_load_dwordx2 s[4:5], s[0:1], %d" % KA_WO)
    a("s_load_dwordx2 s[6:7], s[0:1], %d" % KA_W2)
    a("s_load_dwordx2 s[8:9], s[0:1], %d" % KA_WS)
    a("s_cmp_ge_u32 s2, 256")
    a(f"s_cbranch_scc1 L_{label}_end")
    a(f"s_and_b32 s{sS}, s2, 3")
    a(f"s_bfe_u32 s{sMT}, s2, 0x40002")
    a(f"s_lshr_b32 s{sNT}, s2, 6")
    a(f"v_and_b32 v{vL}, 63, v0")
    a(f"v_lshrrev_b32 v{vT0}, 6, v0")
    a(f"v_lshrrev_b32 v{vG}, 4, v{vL}")
    a(f"v_and_b32 v{vTT}, 15, v{vL}")
    a(f"v_readfirstlane_b32 s{sWV}, v{vT0}")
    a("s_waitcnt lgkmcnt(0)")
    stamp(a, 0)
    make_srd(a, SRD_WO, sWO, D * D * 2)
    make_srd(a, SRD_W2, sW2, F * D * 2)
    make_srd(a, SRD_ACT, sWS, ACT_SIZE)
    make_srd(a, SRD_PT, sWS, PART_SIZE, WS_PART)
    m20, s20 = magic_div(20, 1280)
    a(f"s_mul_i32 s{sT2}, s{sNT}, 288")
    for i in range(5):
        a(f"s_lshl_b32 s{sT0}, s{sWV}, 6")
        a(f"s_add_u32 s{sT0}, s{sT0}, {256*i}")
        a(f"v_add_u32 v{vT0}, s{sT0}, v{vL}")
        a(f"v_mul_u32_u24 v{vT1}, {m20}, v{vT0}")
        a(f"v_lshrrev_b32 v{vT1}, {s20}, v{vT1}")
        a(f"v_mul_u32_u24 v{vT2}, 20, v{vT1}")
        a(f"v_sub_u32 v{vT2}, v{vT0}, v{vT2}")
        a(f"v_lshrrev_b32 v{vT3}, 1, v{vT2}")
        a(f"v_bfe_u32 v{vT4}, v{vT1}, 3, 1")
        a(f"v_xor_b32 v{vT3}, v{vT3}, v{vT4}")
        a(f"v_and_b32 v{vT2}, 1, v{vT2}")
        a(f"v_lshlrev_b32 v{vT4}, 5, v{vT3}")
        a(f"v_lshl_add_u32 v{vT4}, v{vT2}, 4, v{vT4}")
        a(f"v_mul_u32_u24 v{vT1}, 1152, v{vT1}")
        a(f"v_add3_u32 v{vT1}, v{vT1}, v{vT4}, s{sT2}")
        a(f"v_cmp_lt_u32 vcc, 8, v{vT3}")
        a(f"v_mov_b32 v{vT4}, 0x80000000")
        a("s_nop 1")
        a(f"v_cndmask_b32 v{vD+i}, v{vT1}, v{vT4}, vcc")
    a(f"v_lshrrev_b32 v{vT0}, 2, v{vTT}")
    a(f"v_lshl_add_u32 v{vT0}, v{vG}, 3, v{vT0}")
    a(f"v_and_b32 v{vT1}, 3, v{vTT}")
    a(f"v_and_b32 v{vT2}, 1, v{vG}")
    a(f"v_mul_u32_u24 v{vT3}, 320, v{vT0}")
    a(f"v_lshl_add_u32 v{vT3}, v{vT1}, 3, v{vT3}")
    a(f"v_lshlrev_b32 v{vT4}, 5, v{vT2}")
    a(f"v_add_u32 v{vA}, v{vT3}, v{vT4}")
    a(f"v_sub_u32 v{vA+1}, v{vT3}, v{vT4}")
    a(f"v_add_u32 v{vA+2}, {3*K3_STR}, v{vA}")
    a(f"v_add_u32 v{vA+3}, {3*K3_STR}, v{vA+1}")
    a(f"s_lshl_b32 s{sT0}, s{sMT}, 3")
    a(f"s_lshl_b32 s{sT1}, s{sWV}, 1")
    a(f"s_add_u32 s{sT0}, s{sT0}, s{sT1}")
    a(f"s_mul_i32 s{sT0}, s{sT0}, {ACT_KS*1024}")
    a(f"v_lshlrev_b32 v{vAct}, 4, v{vL}")
    a(f"v_add_u32 v{vAct}, s{sT0}, v{vAct}")
    a(f"s_lshl_b32 s{sT0}, s{sS}, 11")
    a(f"s_lshl_b32 s{sT1}, s{sMT}, 7")
    a(f"s_add_u32 s{sT0}, s{sT0}, s{sT1}")
    a(f"s_lshl_b32 s{sT1}, s{sWV}, 5")
    a(f"s_add_u32 s{sT0}, s{sT0}, s{sT1}")
    a(f"v_add_u32 v{vT0}, s{sT0}, v{vTT}")
    a(f"v_mul_u32_u24 v{vT0}, 576, v{vT0}")
    a(f"s_mul_i32 s{sT1}, s{sNT}, 144")
    a(f"v_lshl_add_u32 v{vT0}, v{vG}, 2, v{vT0}")
    a(f"v_add_u32 v{vT0}, s{sT1}, v{vT0}")
    a(f"v_lshlrev_b32 v{vP}, 2, v{vT0}")
    a(f"s_lshl_b32 s{sM0}, s{sWV}, 10")

    a(f"s_cmp_eq_u32 s{sS}, 0")
    a(f"s_cbranch_scc0 L_{label}_v1")

    def variant(nks, ks0_expr, from_wo_stages):
        nst = nks // 2
        NB = 9
        ks0_expr()

        def issue_stage(st):
            import os
            if os.environ.get("K3_NODMA") and st >= 4:
                return
            r = st % K3_R
            if st < from_wo_stages:
                srd, sof = SRD_WO, st * 64 * 1152
            else:
                srd, sof = SRD_W2, None
            for i in range(5):
                a(f"s_add_u32 m0, s{sM0}, {r*K3_STR + i*4096}")
                if sof is not None:
                    a(f"s_mov_b32 s{sT0}, {sof}")
                    so = sT0
                else:
                    so = sSof
                a.vm_op(f"buffer_load_dwordx4 v{vD+i}, s[{srd}:{srd+3}], s{so} offen lds", ("st", st))
            if sof is None:
                a(f"s_add_u32 s{sSof}, s{sSof}, {64*1152}")

        def issue_act(j):
            import os
            if os.environ.get("K3_NOACT") and j >= 6:
                return
            for tb in range(2):
                dst = vAF + ((j % ADEPTH) * 2 + tb) * 4
                a(f"s_add_u32 s{sT1}, s{sT2}, {j*1024 + tb*ACT_KS*1024}")
                a.vm_op(f"buffer_load_dwordx4 {vr(dst,4)}, v{vAct}, s[{SRD_ACT}:{SRD_ACT+3}], s{sT1} offen", ("act", j))

        def frag_reads(i):
            j, b = divmod(i, NB)
            st, jj = divmod(j, 2)
            r = st % K3_R
            va = vA + (r // 3) * 2 + (b % 2)
            off = (r % 3) * K3_STR + jj * 32 * 320 + b * 32
            dst = vFR + (i % NSLOT) * 4
            a.lg_op(f"ds_read_b64_tr_b16 {vr(dst,2)}, v{va} offset:{off}", ("fr", i))
            a.lg_op(f"ds_read_b64_tr_b16 {vr(dst+2,2)}, v{va} offset:{off+4*320}", ("fr", i))

        def sync_stage(st):
            a.wait_vm(("st", st))
            a("s_barrier")
            if st + K3_R - 2 < nst:
                issue_stage(st + K3_R - 2)

        for j in range(min(AD, nks)):
            issue_act(j)
        for st in range(min(K3_R - 2, nst)):
            issue_stage(st)
        total = nks * NB
        stamp(a, 1)
        sync_stage(0)
        stamp(a, 2)
        for i in range(PD):
            frag_reads(i)
        for i in range(total):
            j, b = divmod(i, NB)
            if b == 0 and j in (10, 20, 30):
                stamp(a, 2 + j // 10)
            if b == 0 and j + AD < nks:
                issue_act(j + AD)
            nx = i + PD
            if nx < total:
                j2, b2 = divmod(nx, NB)
                if b2 == 0 and j2 % 2 == 0:
                    sync_stage(j2 // 2)
                frag_reads(nx)
            if b == 0:
                a.wait_vm(("act", j))
            a.wait_lg(("fr", i))
            fr = vFR + (i % NSLOT) * 4
            for tb in range(2):
                import os
                if os.environ.get("K3_NOMFMA") and j > 0:
                    continue
                c = "0" if j == 0 else ar(acc(b, tb), 4)
                af = vAF + ((j % ADEPTH) * 2 + tb) * 4
                a(f"v_mfma_f32_16x16x32_bf16 {ar(acc(b,tb),4)}, {vr(fr,4)}, {vr(af,4)}, {c}")
        a(f"s_branch L_{label}_epi")

    def v0_setup():
        a(f"s_mov_b32 s{sSof}, 0")
        a(f"s_mov_b32 s{sT2}, 0")

    def v1_setup():
        a(f"s_mul_i32 s{sT0}, s{sS}, 40")
        a(f"s_add_u32 s{sT0}, s{sT0}, 2")
        a(f"s_lshl_b32 s{sT2}, s{sT0}, 10")
        a(f"s_sub_u32 s{sT0}, s{sT0}, 18")
        a(f"s_mul_i32 s{sSof}, s{sT0}, {32*1152}")

    save_vm, save_lg = list(a.vm), list(a.lg)
    variant(42, v0_setup, 9)
    a.vm, a.lg = list(save_vm), list(save_lg)
    a.label(f"L_{label}_v1")
    variant(40, v1_setup, 0)
    a.label(f"L_{label}_epi")
    a.vm, a.lg = [], []
    stamp(a, 6)
    a.nop(10)
    for b in range(9):
        for tb in range(2):
            a(f"s_mov_b32 s{sT0}, {tb*16*576*4 + b*64}")
            a(f"buffer_store_dwordx4 {ar(acc(b,tb),4)}, v{vP}, s[{SRD_PT}:{SRD_PT+3}], s{sT0} offen")
    a("s_waitcnt vmcnt(0)")
    stamp(a, 7)
    stamps_out(a, 8, sWS, sWV)
    a.label(f"L_{label}_end")
    a("s_endpgm")
    return NV, 72, K3_R * K3_STR


def gen_k4(a, label):
    kernel_header(a, label)
    a("s_load_dwordx2 s[4:5], s[0:1], %d" % KA_X)
    a("s_load_dwordx2 s[6:7], s[0:1], %d" % KA_OUT)
    a("s_load_dwordx2 s[8:9], s[0:1], %d" % KA_WS)
    a("s_cmp_ge_u32 s2, 576")
    a(f"s_cbranch_scc1 L_{label}_end")
    a("s_waitcnt lgkmcnt(0)")
    make_srd(a, 12, 4, S * D * 2)
    make_srd(a, 16, 6, S * D * 2)
    make_srd(a, 20, 8, PART_SIZE, WS_PART)
    a("s_lshl_b32 s24, s2, 8")
    a("v_add_u32 v1, s24, v0")
    a("v_lshlrev_b32 v2, 4, v1")
    a("v_lshlrev_b32 v3, 5, v1")
    a.vm_op("buffer_load_dwordx4 v[4:7], v2, s[12:15], 0 offen", "x")
    for s_ in range(4):
        a(f"s_mov_b32 s25, {s_*S*D*4}")
        a.vm_op(f"buffer_load_dwordx4 v[{8+8*s_}:{11+8*s_}], v3, s[20:23], s25 offen", ("p", s_))
        a.vm_op(f"buffer_load_dwordx4 v[{12+8*s_}:{15+8*s_}], v3, s[20:23], s25 offen offset:16", ("p", s_))
    a.wait_vm("x")
    for k in range(4):
        a(f"v_lshlrev_b32 v{40+2*k}, 16, v{4+k}")
        a(f"v_and_b32 v{41+2*k}, 0xffff0000, v{4+k}")
    for s_ in range(4):
        a.wait_vm(("p", s_))
        for k in range(8):
            a(f"v_add_f32 v{40+k}, v{40+k}, v{8+8*s_+k}")
    for k in range(4):
        a(f"v_cvt_pk_bf16_f32 v{48+k}, v{40+2*k}, v{41+2*k}")
    a("buffer_store_dwordx4 v[48:51], v2, s[16:19], 0 offen")
    a.label(f"L_{label}_end")
    a("s_endpgm")
    return 56, 0, 0
```

```python
import sys
sys.path.insert(0, "work")
from asmlib import Asm, vr, ar, sr, magic_div, bank_conflicts_b64

NAME = "parallel_sum__linear_kernel_hedgehog__dense_activation_silu__prompt"
S, D, F, H, DH = 2048, 576, 4608, 32, 18

KA_X, KA_WQKV, KA_WPHI, KA_WO, KA_BX, KA_W1, KA_W2, KA_OUT, KA_DBG, KA_WS = [8 * i for i in range(10)]

ACT_KS = 162
WS_ACT = 0
ACT_SIZE = 128 * ACT_KS * 1024
WS_PHIQ = 0x1800000
PHIQ_SIZE = H * S * 72
WS_KVP = 0x2000000
KVP_SIZE = 16 * H * 48 * 32 * 4
WS_PART = 0x3000000
PART_SIZE = 4 * S * D * 4

LOG2E = 1.4426950408889634

PI_OCT = [0, 2, 1, 3]


def f32hex(x):
    import struct
    return "0x%08x" % struct.unpack("<I", struct.pack("<f", x))[0]


def kernel_header(a, label):
    a.raw(".text")
    a.raw(f".globl {label}")
    a.raw(".p2align 8")
    a.raw(f".type {label},@function")
    a.raw(f"{label}:")


def kernel_desc(label, vgpr, agpr, sgpr=102):
    acc_off = ((vgpr + 3) // 4) * 4
    total = acc_off + agpr if agpr else vgpr
    return f""".amdhsa_kernel {label}
  .amdhsa_next_free_vgpr {total}
  .amdhsa_next_free_sgpr {sgpr}
  .amdhsa_accum_offset {acc_off}
  .amdhsa_group_segment_fixed_size 0
  .amdhsa_kernarg_size 80
  .amdhsa_user_sgpr_count 2
  .amdhsa_user_sgpr_kernarg_segment_ptr 1
  .amdhsa_system_sgpr_workgroup_id_x 1
.end_amdhsa_kernel
"""


def make_srd(a, sd, sptr, size, add_lo=None):
    if add_lo is None:
        a(f"s_mov_b32 s{sd}, s{sptr}")
        a(f"s_mov_b32 s{sd+1}, s{sptr+1}")
    else:
        a(f"s_add_u32 s{sd}, s{sptr}, {add_lo}")
        a(f"s_addc_u32 s{sd+1}, s{sptr+1}, 0")
    a(f"s_mov_b32 s{sd+2}, {size}")
    a(f"s_mov_b32 s{sd+3}, 0x00020000")


K1_R = 4
K1_BB = 0
K1_BSTR = 10240
K1_AB = K1_R * K1_BSTR
K1_ASTR = 18432
K1_WPH = K1_AB + K1_R * K1_ASTR
K1_LDS = K1_WPH + 16384
K1_PB = 0
PB_STR = 264
K1_VT = K1_PB + 128 * PB_STR
VT_STR = 272
K1_PKT = K1_VT + 2 * 32 * VT_STR
assert K1_PKT + 2 * 48 * VT_STR <= K1_WPH

NBF = 18
NBA = 7
NB1 = NBF + NBA


def k1_A_pos(row, col):
    b, c = divmod(col, 16)
    par = (row >> 3) & 1
    return row * 576 + ((b ^ par) * 16 + c) * 2


def k1_B_pos(row, a):
    seg, j = divmod(a, 36)
    col = 40 * seg + j
    ch, inb = divmod(col, 8)
    p, half = divmod(ch, 2)
    sw = (row & 3) | (((row >> 3) & 1) << 2)
    return row * 256 + ((p ^ sw) * 2 + half) * 16 + inb * 2


def check_k1_layout():
    worstA = worstB = 1
    for half2 in range(2):
        for b in range(NBF):
            addrs = []
            for l in range(64):
                g, i4 = divmod(l, 16)
                r, c = divmod(i4, 4)
                row = 8 * g + r + 4 * half2
                addrs.append(k1_A_pos(row, 16 * b + 4 * c))
            worstA = max(worstA, bank_conflicts_b64(addrs))
        for ab in range(NBA):
            addrs = []
            for l in range(64):
                g, i4 = divmod(l, 16)
                r, c = divmod(i4, 4)
                row = 8 * g + r + 4 * half2
                a0 = 16 * ab + 4 * c
                if a0 >= 108:
                    sw = (row & 3) | (((row >> 3) & 1) << 2)
                    addrs.append(row * 256 + ((7 ^ sw) * 2 + 1) * 16)
                else:
                    addrs.append(k1_B_pos(row, a0))
            worstB = max(worstB, bank_conflicts_b64(addrs))
    return worstA, worstB


import os
STAMPS = bool(os.environ.get("STAMPS"))


def stamp(a, idx):
    if not STAMPS:
        return
    a(f"s_memtime s[{64+2*idx}:{65+2*idx}]")
    a.wait_all(vm=False, lg=True)


def stamps_out(a, n, sws_pair, swave):
    if not STAMPS:
        return
    a(f"s_add_u32 s60, s{sws_pair}, {0x9000000 if n == 10 else 0x9100000}")
    a(f"s_addc_u32 s61, s{sws_pair+1}, 0")
    a("s_mov_b32 s62, 0x1000000")
    a("s_mov_b32 s63, 0x00020000")
    a(f"s_lshl_b32 s59, s2, 2")
    a(f"s_add_u32 s59, s59, s{swave}")
    a(f"s_lshl_b32 s59, s59, 8")
    a("v_mov_b32 v1, 0")
    for i in range(n):
        a(f"v_mov_b32 v2, s{64+2*i}")
        a(f"v_mov_b32 v3, s{65+2*i}")
        a(f"buffer_store_dwordx2 v[2:3], v1, s[60:63], s59 offen offset:{8*i}")
    a("s_waitcnt vmcnt(0)")


def gen_k1(a, label):
    kernel_header(a, label)
    sX, sQ, sPH, sW1, sWS = 4, 6, 8, 10, 12
    SRD_X, SRD_W1, SRD_Q, SRD_ACT, SRD_PQ, SRD_KV, SRD_D4 = 16, 20, 24, 28, 32, 36, 40
    sMT, sNT, sWV = 44, 45, 46
    sSofA, sSofB, sM04, sStr4, sSof4, sInc4 = 47, 48, 49, 50, 51, 52
    sT0, sT1, sT2, sT3 = 53, 54, 55, 56
    sM0A, sM0B = 57, 58
    vLane = 0
    vL = 1
    vG, vTT = 2, 3
    vT0, vT1, vT2, vT3, vT4, vT5 = 4, 5, 6, 7, 8, 9
    vX0, vX1 = 10, 11
    vD = 12
    vAe, vAo = 19, 20
    vBt = 21
    vH = 39
    vS = 28
    vFR = 40
    NSLOT = 8
    vXF = 72
    vEP = 216
    NV = 256
    PD = 6

    def xf(tb, ks):
        return vXF + (tb * 18 + ks) * 4

    def acc(b, tb):
        return (b * 2 + tb) * 4
    ACC2 = NB1 * 8
    NA = ACC2 + 40

    a("s_load_dwordx2 s[4:5], s[0:1], %d" % KA_X)
    a("s_load_dwordx2 s[6:7], s[0:1], %d" % KA_WQKV)
    a("s_load_dwordx2 s[8:9], s[0:1], %d" % KA_WPHI)
    a("s_load_dwordx2 s[10:11], s[0:1], %d" % KA_W1)
    a("s_load_dwordx2 s[12:13], s[0:1], %d" % KA_WS)
    a("s_cmp_ge_u32 s2, 256")
    a(f"s_cbranch_scc1 L_{label}_end")
    a(f"s_lshr_b32 s{sMT}, s2, 4")
    a(f"s_and_b32 s{sNT}, s2, 15")
    a(f"v_and_b32 v{vL}, 63, v0")
    a(f"v_lshrrev_b32 v{vT0}, 6, v0")
    a(f"v_lshrrev_b32 v{vG}, 4, v{vL}")
    a(f"v_and_b32 v{vTT}, 15, v{vL}")
    a(f"v_readfirstlane_b32 s{sWV}, v{vT0}")
    a("s_waitcnt lgkmcnt(0)")
    stamp(a, 0)
    make_srd(a, SRD_X, sX, S * D * 2)
    make_srd(a, SRD_W1, sW1, D * F * 2)
    make_srd(a, SRD_Q, sQ, D * 3 * D * 2)
    make_srd(a, SRD_ACT, sWS, ACT_SIZE)
    make_srd(a, SRD_PQ, sWS, PHIQ_SIZE, WS_PHIQ)
    make_srd(a, SRD_KV, sWS, KVP_SIZE, WS_KVP)
    a(f"s_lshl_b32 s{sT0}, s{sMT}, 7")
    a(f"s_lshl_b32 s{sT1}, s{sWV}, 5")
    a(f"s_add_u32 s{sT0}, s{sT0}, s{sT1}")
    a(f"v_add_u32 v{vT1}, s{sT0}, v{vTT}")
    a(f"v_mul_u32_u24 v{vX0}, 1152, v{vT1}")
    a(f"v_lshlrev_b32 v{vT2}, 4, v{vG}")
    a(f"v_add_u32 v{vX0}, v{vX0}, v{vT2}")
    a(f"v_add_u32 v{vX1}, {16*1152}, v{vX0}")
    a(f"s_lshl_b32 s{sT0}, s{sMT}, 6")
    for ks in range(18):
        for tb in range(2):
            a.vm_op(f"buffer_load_dwordx4 {vr(xf(tb,ks),4)}, v{vX0+tb}, s[{SRD_X}:{SRD_X+3}], s{sT0} offen", "x")
        a(f"s_add_u32 s{sT0}, s{sT0}, 64")
        a(f"s_cmp_eq_u32 s{sT0}, 1152")
        a(f"s_cselect_b32 s{sT0}, 0, s{sT0}")

    mul36, sh36 = magic_div(36, 64 * 28)
    a(f"s_mul_i32 s{sT2}, s{sNT}, 576")
    a(f"s_mul_i32 s{sT3}, s{sNT}, 72")
    for i in range(5):
        a(f"s_lshl_b32 s{sT0}, s{sWV}, 6")
        a(f"s_add_u32 s{sT0}, s{sT0}, {256*i}")
        a(f"v_add_u32 v{vT0}, s{sT0}, v{vL}")
        a(f"v_mul_u32_u24 v{vT1}, {mul36}, v{vT0}")
        a(f"v_lshrrev_b32 v{vT1}, {sh36}, v{vT1}")
        a(f"v_mul_u32_u24 v{vT2}, 36, v{vT1}")
        a(f"v_sub_u32 v{vT2}, v{vT0}, v{vT2}")
        a(f"v_lshrrev_b32 v{vT3}, 1, v{vT2}")
        a(f"v_bfe_u32 v{vT4}, v{vT1}, 3, 1")
        a(f"v_xor_b32 v{vT3}, v{vT3}, v{vT4}")
        a(f"v_and_b32 v{vT2}, 1, v{vT2}")
        a(f"v_lshlrev_b32 v{vT3}, 5, v{vT3}")
        a(f"v_lshl_add_u32 v{vT3}, v{vT2}, 4, v{vT3}")
        a(f"v_mul_u32_u24 v{vT1}, 9216, v{vT1}")
        a(f"v_add3_u32 v{vD+i}, v{vT1}, v{vT3}, s{sT2}")
    for i in range(5, 7):
        a(f"s_lshl_b32 s{sT0}, s{sWV}, 6")
        a(f"s_add_u32 s{sT0}, s{sT0}, {256*(i-5)}")
        a(f"v_add_u32 v{vT0}, s{sT0}, v{vL}")
        a(f"v_lshrrev_b32 v{vT1}, 4, v{vT0}")
        a(f"v_and_b32 v{vT2}, 15, v{vT0}")
        a(f"v_lshrrev_b32 v{vT3}, 1, v{vT2}")
        a(f"v_and_b32 v{vT4}, 3, v{vT1}")
        a(f"v_bfe_u32 v{vT5}, v{vT1}, 3, 1")
        a(f"v_lshl_or_b32 v{vT4}, v{vT5}, 2, v{vT4}")
        a(f"v_xor_b32 v{vT3}, v{vT3}, v{vT4}")
        a(f"v_and_b32 v{vT2}, 1, v{vT2}")
        a(f"v_lshl_add_u32 v{vT3}, v{vT3}, 1, v{vT2}")
        a(f"v_mul_u32_u24 v{vT4}, 205, v{vT3}")
        a(f"v_lshrrev_b32 v{vT4}, 10, v{vT4}")
        a(f"v_mul_u32_u24 v{vT5}, 5, v{vT4}")
        a(f"v_sub_u32 v{vT5}, v{vT3}, v{vT5}")
        a(f"v_mul_u32_u24 v{vT4}, 1152, v{vT4}")
        a(f"v_lshl_add_u32 v{vT4}, v{vT5}, 4, v{vT4}")
        a(f"v_mul_u32_u24 v{vT1}, 3456, v{vT1}")
        a(f"v_add3_u32 v{vT1}, v{vT1}, v{vT4}, s{sT3}")
        a(f"v_cmp_eq_u32 vcc, 15, v{vT3}")
        a(f"v_mov_b32 v{vT4}, 0x80000000")
        a("s_nop 1")
        a(f"v_cndmask_b32 v{vD+i}, v{vT1}, v{vT4}, vcc")
    a(f"s_lshl_b32 s{sM0A}, s{sWV}, 10")
    a(f"s_add_u32 s{sM0A}, s{sM0A}, {K1_AB}")
    a(f"s_lshl_b32 s{sM0B}, s{sWV}, 10")
    a(f"s_add_u32 s{sM0B}, s{sM0B}, {K1_BB}")
    a(f"s_cmp_lt_u32 s{sWV}, 2")
    a(f"s_cselect_b32 s{SRD_D4+2}, s{SRD_W1+2}, 0")
    a(f"s_mov_b32 s{SRD_D4}, s{SRD_W1}")
    a(f"s_mov_b32 s{SRD_D4+1}, s{SRD_W1+1}")
    a(f"s_mov_b32 s{SRD_D4+3}, 0x00020000")
    a(f"s_mov_b32 s{sT0}, {K1_BSTR}")
    a(f"s_cselect_b32 s{sStr4}, {K1_ASTR}, s{sT0}")
    a(f"s_add_u32 s{sT0}, s{sM0A}, {16*1024}")
    a(f"s_lshl_b32 s{sT1}, s{sWV}, 10")
    a(f"s_add_u32 s{sT1}, s{sT1}, {K1_BB + 8192 - 2048}")
    a(f"s_cmp_lt_u32 s{sWV}, 2")
    a(f"s_cselect_b32 s{sM04}, s{sT0}, s{sT1}")
    a(f"s_mul_i32 s{sSofA}, s{sMT}, {32*9216}")
    a(f"s_mul_i32 s{sSofB}, s{sMT}, {32*3456}")

    def issue_stage(stage):
        r = stage % K1_R
        if os.environ.get("K1_NODMA") and stage >= 2:
            return
        for i in range(7):
            if i < 4:
                a(f"s_add_u32 m0, s{sM0A}, {i*4096 + r*K1_ASTR}")
                a("s_nop 0")
                a.vm_op(f"buffer_load_dwordx4 v{vD+i}, s[{SRD_W1}:{SRD_W1+3}], s{sSofA} offen lds", ("st", stage))
            elif i == 4:
                a(f"s_mul_i32 s{sT0}, s{sStr4}, {r}")
                a(f"s_add_u32 m0, s{sM04}, s{sT0}")
                a("s_nop 0")
                a.vm_op(f"buffer_load_dwordx4 v{vD+i}, s[{SRD_D4}:{SRD_D4+3}], s{sSofA} offen lds", ("st", stage))
            else:
                a(f"s_add_u32 m0, s{sM0B}, {(i-5)*4096 + r*K1_BSTR}")
                a("s_nop 0")
                a.vm_op(f"buffer_load_dwordx4 v{vD+i}, s[{SRD_Q}:{SRD_Q+3}], s{sSofB} offen lds", ("st", stage))
        a(f"s_add_u32 s{sSofA}, s{sSofA}, {32*9216}")
        a(f"s_cmp_eq_u32 s{sSofA}, {18*32*9216}")
        a(f"s_cselect_b32 s{sSofA}, 0, s{sSofA}")
        a(f"s_add_u32 s{sSofB}, s{sSofB}, {32*3456}")
        a(f"s_cmp_eq_u32 s{sSofB}, {18*32*3456}")
        a(f"s_cselect_b32 s{sSofB}, 0, s{sSofB}")

    issue_stage(0)
    issue_stage(1)

    a(f"v_lshrrev_b32 v{vT0}, 2, v{vTT}")
    a(f"v_lshl_add_u32 v{vT0}, v{vG}, 3, v{vT0}")
    a(f"v_and_b32 v{vT1}, 3, v{vTT}")
    a(f"v_and_b32 v{vT2}, 1, v{vG}")
    a(f"v_mul_u32_u24 v{vT3}, 576, v{vT0}")
    a(f"v_lshl_add_u32 v{vT3}, v{vT1}, 3, v{vT3}")
    a(f"v_add_u32 v{vT3}, {K1_AB}, v{vT3}")
    a(f"v_lshlrev_b32 v{vT4}, 5, v{vT2}")
    a(f"v_add_u32 v{vAe}, v{vT3}, v{vT4}")
    a(f"v_sub_u32 v{vAo}, v{vT3}, v{vT4}")
    mulb, shb = magic_div(36, 128)
    a(f"v_and_b32 v{vT3}, 3, v{vT0}")
    a(f"v_lshl_or_b32 v{vT3}, v{vT2}, 2, v{vT3}")
    for ab in range(NBA):
        a(f"v_lshlrev_b32 v{vT4}, 2, v{vT1}")
        a(f"v_add_u32 v{vT4}, {16*ab}, v{vT4}")
        a(f"v_mul_u32_u24 v{vT5}, {mulb}, v{vT4}")
        a(f"v_lshrrev_b32 v{vT5}, {shb}, v{vT5}")
        a(f"v_lshlrev_b32 v{vS}, 2, v{vT5}")
        a(f"v_add_u32 v{vT4}, v{vT4}, v{vS}")
        a(f"v_lshrrev_b32 v{vT5}, 4, v{vT4}")
        a(f"v_xor_b32 v{vT5}, v{vT5}, v{vT3}")
        a(f"v_and_b32 v{vT4}, 15, v{vT4}")
        a(f"v_lshlrev_b32 v{vT4}, 1, v{vT4}")
        a(f"v_lshl_add_u32 v{vT4}, v{vT5}, 5, v{vT4}")
        a(f"v_lshl_add_u32 v{vBt+ab}, v{vT0}, 8, v{vT4}")
    assert K1_BB == 0
    a(f"v_and_b32 v{vT0}, 1, v{vG}")
    a(f"v_lshrrev_b32 v{vT1}, 1, v{vG}")
    a(f"v_lshl_or_b32 v{vT0}, v{vT0}, 1, v{vT1}")
    a(f"v_lshl_add_u32 v{vT0}, v{vT0}, 4, v{vTT}")
    a(f"v_lshlrev_b32 v{vH}, 4, v{vT0}")
    a(f"s_lshl_b32 s{sT0}, s{sMT}, 3")
    a(f"s_lshl_b32 s{sT1}, s{sWV}, 1")
    a(f"s_add_u32 s{sT0}, s{sT0}, s{sT1}")
    a(f"s_mul_i32 s{sT0}, s{sT0}, {ACT_KS*1024}")
    a(f"s_mul_i32 s{sT1}, s{sNT}, {9*1024}")
    a(f"s_add_u32 s{sT0}, s{sT0}, s{sT1}")
    a(f"s_add_u32 s{sT0}, s{sT0}, {18*1024}")
    a(f"v_add_u32 v{vH}, s{sT0}, v{vH}")

    a(f"v_lshlrev_b32 v{vT0}, 4, v0")
    a(f"v_add_u32 v{vT0}, {K1_WPH}, v{vT0}")
    a(f"v_mov_b32 v{vS}, 0")
    a(f"v_mov_b32 v{vS+1}, 0")
    a(f"v_mov_b32 v{vS+2}, 0")
    a(f"v_mov_b32 v{vS+3}, 0")
    for i in range(4):
        a.lg_op(f"ds_write_b128 v{vT0}, {vr(vS,4)} offset:{i*4096}", "z")
    m324, s324 = magic_div(324, 1536)
    m18, s18 = magic_div(18, 324)
    a(f"s_mul_i32 s{sT0}, s{sNT}, {2*324*2}")
    a(f"s_add_u32 s{sT1}, s{sPH}, s{sT0}")
    a(f"s_addc_u32 s{sT2}, s{sPH+1}, 0")
    a(f"s_mov_b32 s60, s{sT1}")
    a(f"s_mov_b32 s61, s{sT2}")
    a(f"s_mov_b32 s62, {2*324*2}")
    a(f"s_mov_b32 s63, 0x00020000")
    vW = vEP
    for i in range(6):
        a(f"v_add_u32 v{vT0}, {256*i}, v0")
        a(f"v_mul_u32_u24 v{vT1}, {m324}, v{vT0}")
        a(f"v_lshrrev_b32 v{vT1}, {s324}, v{vT1}")
        a(f"v_mul_u32_u24 v{vT2}, 324, v{vT1}")
        a(f"v_sub_u32 v{vT2}, v{vT0}, v{vT2}")
        a(f"v_mul_u32_u24 v{vT3}, {m18}, v{vT2}")
        a(f"v_lshrrev_b32 v{vT3}, {s18}, v{vT3}")
        a(f"v_mul_u32_u24 v{vT4}, 18, v{vT3}")
        a(f"v_sub_u32 v{vT4}, v{vT2}, v{vT4}")
        a(f"v_and_b32 v{vT5}, 1, v{vT1}")
        a(f"v_mul_u32_u24 v{vT5}, 324, v{vT5}")
        a(f"v_add_lshl_u32 v{vT5}, v{vT5}, v{vT2}, 1")
        a(f"v_cmp_gt_u32 vcc, 1296, v{vT0}")
        a(f"v_mov_b32 v{vS}, 0x80000000")
        a("s_nop 1")
        a(f"v_cndmask_b32 v{vT5}, v{vS}, v{vT5}, vcc")
        a.vm_op(f"buffer_load_ushort v{vW+i}, v{vT5}, s[60:63], 0 offen", "wp")
        a(f"v_mul_u32_u24 v{vT1}, 18, v{vT1}")
        a(f"v_add_u32 v{vT4}, v{vT4}, v{vT1}")
        a(f"v_add_u32 v{vT3}, v{vT3}, v{vT1}")
        a(f"v_mul_u32_u24 v{vT4}, 192, v{vT4}")
        a(f"v_lshl_add_u32 v{vT4}, v{vT3}, 1, v{vT4}")
        a(f"v_add_u32 v{vT4}, {K1_WPH}, v{vT4}")
        a(f"v_mov_b32 v{vS}, {K1_WPH + 16384 - 4}")
        a("s_nop 1")
        a(f"v_cndmask_b32 v{vW+6+i}, v{vS}, v{vT4}, vcc")
    a.wait_lg("z")
    a("s_barrier")

    a.wait_vm("x")
    stamp(a, 1)
    vOne = vS
    a(f"v_mov_b32 v{vOne}, 0x3f803f80")
    vSum = vS + 1
    for k in range(8):
        a(f"v_mov_b32 v{vSum+k}, 0")
    for tb in range(2):
        for ks in range(18):
            for j in range(4):
                r = xf(tb, ks) + j
                acs = vSum + tb * 4 + (j & 1) * 2
                a(f"v_dot2_f32_bf16 v{acs}, v{r}, v{vOne}, v{acs}")
                a(f"v_dot2_f32_bf16 v{acs+1}, v{r}, v{r}, v{acs+1}")
    a("s_nop 3")
    for tb in range(2):
        for k in range(2):
            a(f"v_add_f32 v{vSum+tb*4+k}, v{vSum+tb*4+k}, v{vSum+tb*4+2+k}")
    vals = [vSum + 0, vSum + 1, vSum + 4, vSum + 5]
    tmp = vSum + 2
    for op in ("v_permlane16_swap_b32", "v_permlane32_swap_b32"):
        for v in vals:
            a(f"v_mov_b32 v{tmp}, v{v}")
            a("s_nop 1")
            a(f"{op} v{v}, v{tmp}")
            a("s_nop 1")
            a(f"v_add_f32 v{v}, v{v}, v{tmp}")
    vRs = [vEP + 12, vEP + 13]
    vNm = [vEP + 14, vEP + 15]

    def bf16r(dst, src):
        a(f"v_cvt_pk_bf16_f32 v{dst}, v{src}, v{src}")
        a(f"v_lshlrev_b32 v{dst}, 16, v{dst}")
    for tb in range(2):
        s_, q_ = vals[tb * 2], vals[tb * 2 + 1]
        a(f"v_mul_f32 v{s_}, {f32hex(1.0/576)}, v{s_}")
        a(f"v_mul_f32 v{q_}, {f32hex(1.0/576)}, v{q_}")
        a(f"v_fma_f32 v{q_}, -v{s_}, v{s_}, v{q_}")
        a(f"v_max_f32 v{q_}, 0, v{q_}")
        bf16r(s_, s_)
        bf16r(q_, q_)
        a(f"v_add_f32 v{q_}, {f32hex(1e-5)}, v{q_}")
        bf16r(q_, q_)
        a(f"v_sqrt_f32 v{q_}, v{q_}")
        a("s_nop 0")
        bf16r(q_, q_)
        a(f"v_rcp_f32 v{vRs[tb]}, v{q_}")
        a("s_nop 0")
        a(f"v_mul_f32 v{vNm[tb]}, v{s_}, v{vRs[tb]}")
        a(f"v_sub_f32 v{vNm[tb]}, 0, v{vNm[tb]}")
    for tb in range(2):
        for ks in range(18):
            for j in range(4):
                r = xf(tb, ks) + j
                t0, t1 = vT0 + (j & 1) * 2, vT1 + (j & 1) * 2
                a(f"v_lshlrev_b32 v{t0}, 16, v{r}")
                a(f"v_and_b32 v{t1}, 0xffff0000, v{r}")
                a(f"v_fma_f32 v{t0}, v{t0}, v{vRs[tb]}, v{vNm[tb]}")
                a(f"v_fma_f32 v{t1}, v{t1}, v{vRs[tb]}, v{vNm[tb]}")
                a(f"v_cvt_pk_bf16_f32 v{r}, v{t0}, v{t1}")

    total = 18 * NB1

    def frag_reads(i):
        ks, b = divmod(i, NB1)
        r = ks % K1_R
        dst = vFR + (i % NSLOT) * 4
        if b < NBF:
            va = vAe if b % 2 == 0 else vAo
            off = r * K1_ASTR + b * 32
            second = 4 * 576
        else:
            va = vBt + (b - NBF)
            off = r * K1_BSTR
            second = 4 * 256
        a.lg_op(f"ds_read_b64_tr_b16 {vr(dst,2)}, v{va} offset:{off}", ("fr", i))
        a.lg_op(f"ds_read_b64_tr_b16 {vr(dst+2,2)}, v{va} offset:{off+second}", ("fr", i))

    def sync_stage(ks):
        a.wait_vm(("st", ks))
        a("s_barrier")
        if ks + 2 < 18:
            issue_stage(ks + 2)

    a.wait_vm("wp")
    for i in range(6):
        a.lg_op(f"ds_write_b16 v{vW+6+i}, v{vW+i}", "wps")
    a.wait_lg("wps")
    stamp(a, 2)
    sync_stage(0)
    stamp(a, 3)
    for i in range(PD):
        frag_reads(i)
    for i in range(total):
        nx = i + PD
        if nx < total:
            ks2, b2 = divmod(nx, NB1)
            if b2 == 0:
                sync_stage(ks2)
            frag_reads(nx)
        ks, b = divmod(i, NB1)
        if i == 9 * NB1:
            stamp(a, 4)
        a.wait_lg(("fr", i))
        fr = vFR + (i % NSLOT) * 4
        for tb in range(2):
            c = "0" if ks == 0 else ar(acc(b, tb), 4)
            if os.environ.get("K1_NOMFMA") and ks > 0:
                continue
            a(f"v_mfma_f32_16x16x32_bf16 {ar(acc(b,tb),4)}, {vr(fr,4)}, {vr(xf(tb,ks),4)}, {c}")
    a.nop(10)

    stamp(a, 5)
    vE = vXF
    nset = 0
    for tb in range(2):
        for pr in range(9):
            base = vE + (nset % 6) * 20
            nset += 1
            xs = base
            ts = base + 8
            pk = base + 16
            for k in range(8):
                src = acc(2 * pr + k // 4, tb) + (k % 4)
                a(f"v_accvgpr_read_b32 v{xs+k}, a{src}")
            for k in range(8):
                a(f"v_mul_f32 v{ts+k}, {f32hex(-LOG2E)}, v{xs+k}")
            for k in range(8):
                a(f"v_exp_f32 v{ts+k}, v{ts+k}")
            for k in range(8):
                a(f"v_add_f32 v{ts+k}, 1.0, v{ts+k}")
            for k in range(8):
                a(f"v_rcp_f32 v{ts+k}, v{ts+k}")
            for k in range(8):
                a(f"v_mul_f32 v{xs+k}, v{xs+k}, v{ts+k}")
            for k in range(4):
                a(f"v_cvt_pk_bf16_f32 v{pk+k}, v{xs+2*k}, v{xs+2*k+1}")
            a("s_nop 1")
            a(f"v_permlane16_swap_b32 v{pk}, v{pk+2}")
            a(f"v_permlane16_swap_b32 v{pk+1}, v{pk+3}")
            a(f"s_mov_b32 s{sT0}, {tb*ACT_KS*1024 + pr*1024}")
            a("s_nop 0")
            a.vm_op(f"buffer_store_dwordx4 {vr(pk,4)}, v{vH}, s[{SRD_ACT}:{SRD_ACT+3}], s{sT0} offen", "hs")

    stamp(a, 6)
    vB2 = vEP
    vV = vEP + 24
    vTmp = vE
    for tb in range(2):
        for pk2 in range(3):
            dst = vB2 + (tb * 3 + pk2) * 4
            for k in range(8):
                src = acc(NBF + 2 * pk2 + k // 4, tb) + (k % 4)
                a(f"v_accvgpr_read_b32 v{vTmp+k}, a{src}")
            for k in range(4):
                a(f"v_cvt_pk_bf16_f32 v{dst+k}, v{vTmp+2*k}, v{vTmp+2*k+1}")
            if pk2 == 2:
                for k in range(4):
                    a(f"v_mov_b32 v{vV + tb*6 + k}, v{dst+k}")
            a("s_nop 1")
            a(f"v_permlane16_swap_b32 v{dst}, v{dst+2}")
            a(f"v_permlane16_swap_b32 v{dst+1}, v{dst+3}")
        for k in range(4):
            src = acc(NBF + 6, tb) + k
            a(f"v_accvgpr_read_b32 v{vTmp+k}, a{src}")
        for k in range(2):
            a(f"v_cvt_pk_bf16_f32 v{vV + tb*6 + 4 + k}, v{vTmp+2*k}, v{vTmp+2*k+1}")
    nz = [(0, 0), (1, 0), (1, 1), (2, 0), (2, 1), (3, 1), (3, 2), (4, 1), (4, 2)]
    a(f"v_and_b32 v{vT0}, 1, v{vG}")
    a(f"v_lshrrev_b32 v{vT1}, 1, v{vG}")
    a(f"v_lshl_or_b32 v{vT0}, v{vT0}, 1, v{vT1}")
    a(f"v_lshlrev_b32 v{vT0}, 4, v{vT0}")
    a(f"v_mul_u32_u24 v{vT1}, 192, v{vTT}")
    a(f"v_add_u32 v{vT0}, v{vT0}, v{vT1}")
    a(f"v_add_u32 v{vT0}, {K1_WPH}, v{vT0}")
    vA2 = vE + 96
    for n, (mb, k2) in enumerate(nz):
        dst = vA2 + n * 4
        a.lg_op(f"ds_read_b128 {vr(dst,4)}, v{vT0} offset:{mb*16*192 + k2*64}", ("a2", n))
        if n >= 3 or n == len(nz) - 1:
            pass
    first = {}
    for n, (mb, k2) in enumerate(nz):
        if n == 8:
            pass
        a.wait_lg(("a2", n))
        src = vA2 + n * 4
        for tb in range(2):
            d = ACC2 + (mb * 2 + tb) * 4
            c = ar(d, 4) if (mb, tb) in first else "0"
            first[(mb, tb)] = True
            a(f"v_mfma_f32_16x16x32_bf16 {ar(d,4)}, {vr(src,4)}, {vr(vB2+(tb*3+k2)*4,4)}, {c}")
        if n == 7:
            pass
    a.nop(10)
    a("s_barrier")
    a(f"s_lshl_b32 s{sT0}, s{sWV}, 5")
    a(f"v_add_u32 v{vT0}, s{sT0}, v{vTT}")
    a(f"v_mul_u32_u24 v{vT0}, {PB_STR}, v{vT0}")
    a(f"v_lshl_add_u32 v{vT0}, v{vG}, 3, v{vT0}")
    a(f"v_add_u32 v{vT0}, {K1_PB}, v{vT0}")
    for tb in range(2):
        for mb in range(5):
            d = ACC2 + (mb * 2 + tb) * 4
            for k in range(4):
                a(f"v_accvgpr_read_b32 v{vTmp+k}, a{d+k}")
            a(f"v_cvt_pk_bf16_f32 v{vTmp+4}, v{vTmp}, v{vTmp+1}")
            a(f"v_cvt_pk_bf16_f32 v{vTmp+5}, v{vTmp+2}, v{vTmp+3}")
            a.lg_op(f"ds_write_b64 v{vT0}, {vr(vTmp+4,2)} offset:{tb*16*PB_STR + mb*32}", "pb")
        for k3 in range(3):
            a.lg_op(f"ds_write_b64 v{vT0}, {vr(vV + tb*6 + 2*k3, 2)} offset:{tb*16*PB_STR + 160 + k3*32}", "pb")
    a.wait_lg("pb")
    a("s_barrier")
    stamp(a, 7)
    a(f"v_and_b32 v{vT0}, 127, v0")
    a(f"v_lshrrev_b32 v{vT1}, 7, v0")
    a(f"v_mul_u32_u24 v{vT2}, {PB_STR}, v{vT0}")
    a(f"v_mul_u32_u24 v{vT3}, 36, v{vT1}")
    a(f"v_add_u32 v{vT2}, v{vT2}, v{vT3}")
    a(f"v_add_u32 v{vT2}, {K1_PB}, v{vT2}")
    vP = vE
    for k in range(9):
        a.lg_op(f"ds_read_b32 v{vP+k}, v{vT2} offset:{4*k}", "pr")
        a.lg_op(f"ds_read_b32 v{vP+9+k}, v{vT2} offset:{72+4*k}", "pr")
        a.lg_op(f"ds_read_b32 v{vP+18+k}, v{vT2} offset:{160+16+4*k}", "pr")
    a(f"v_lshlrev_b32 v{vT3}, 1, v{vT0}")
    a(f"v_mul_u32_u24 v{vT4}, {32*VT_STR}, v{vT1}")
    a(f"v_add_u32 v{vT4}, v{vT4}, v{vT3}")
    a(f"v_add_u32 v{vT4}, {K1_VT}, v{vT4}")
    a(f"v_mul_u32_u24 v{vT5}, {48*VT_STR}, v{vT1}")
    a(f"v_add_u32 v{vT5}, v{vT5}, v{vT3}")
    a(f"v_add_u32 v{vT5}, {K1_PKT}, v{vT5}")
    a(f"s_lshl_b32 s{sT0}, s{sNT}, 1")
    a(f"v_add_u32 v{vS}, s{sT0}, v{vT1}")
    a(f"v_lshlrev_b32 v{vS}, 11, v{vS}")
    a(f"s_lshl_b32 s{sT0}, s{sMT}, 7")
    a(f"v_add3_u32 v{vS}, v{vS}, v{vT0}, s{sT0}")
    a(f"v_mul_u32_u24 v{vS}, 72, v{vS}")
    a.wait_lg("pr")
    for k in range(9):
        a.lg_op(f"ds_write_b16 v{vT4}, v{vP+18+k} offset:{(2*k)*VT_STR}", "vt")
        a.lg_op(f"ds_write_b16_d16_hi v{vT4}, v{vP+18+k} offset:{(2*k+1)*VT_STR}", "vt")
    a(f"v_mov_b32 v{vS+1}, 0x3f80")
    a.lg_op(f"ds_write_b16 v{vT4}, v{vS+1} offset:{18*VT_STR}", "vt")

    def softmax_pair(src, out):
        f = vE + 64
        e = vE + 84
        mx, mn, sp, sm = vE + 124, vE + 125, vE + 126, vE + 127
        for k in range(9):
            a(f"v_lshlrev_b32 v{f+2*k}, 16, v{src+k}")
            a(f"v_and_b32 v{f+2*k+1}, 0xffff0000, v{src+k}")
        a(f"v_max3_f32 v{mx}, v{f}, v{f+1}, v{f+2}")
        a(f"v_min3_f32 v{mn}, v{f}, v{f+1}, v{f+2}")
        for k in range(3, 18, 2):
            if k + 1 < 18:
                a(f"v_max3_f32 v{mx}, v{mx}, v{f+k}, v{f+k+1}")
                a(f"v_min3_f32 v{mn}, v{mn}, v{f+k}, v{f+k+1}")
            else:
                a(f"v_max_f32 v{mx}, v{mx}, v{f+k}")
                a(f"v_min_f32 v{mn}, v{mn}, v{f+k}")
        a(f"v_mul_f32 v{mx}, {f32hex(-LOG2E)}, v{mx}")
        a(f"v_mul_f32 v{mn}, {f32hex(LOG2E)}, v{mn}")
        a(f"v_mov_b32 v{sm}, {f32hex(LOG2E)}")
        for k in range(18):
            a(f"v_fma_f32 v{e+k}, v{f+k}, v{sm}, v{mx}")
            a(f"v_fma_f32 v{e+18+k}, -v{f+k}, v{sm}, v{mn}")
        for k in range(36):
            a(f"v_exp_f32 v{e+k}, v{e+k}")
        a("s_nop 0")
        a(f"v_add_f32 v{sp}, v{e}, v{e+1}")
        a(f"v_add_f32 v{sm}, v{e+18}, v{e+19}")
        for k in range(2, 18):
            a(f"v_add_f32 v{sp}, v{sp}, v{e+k}")
            a(f"v_add_f32 v{sm}, v{sm}, v{e+18+k}")
        a(f"v_rcp_f32 v{sp}, v{sp}")
        a(f"v_rcp_f32 v{sm}, v{sm}")
        a("s_nop 0")
        for k in range(18):
            a(f"v_mul_f32 v{e+k}, v{e+k}, v{sp}")
            a(f"v_mul_f32 v{e+18+k}, v{e+18+k}, v{sm}")
        for k in range(18):
            a(f"v_cvt_pk_bf16_f32 v{out+k}, v{e+2*k}, v{e+2*k+1}")

    vO = vE + 32
    softmax_pair(vP, vO)
    for k in range(9):
        a.vm_op(f"buffer_store_dwordx2 {vr(vO+2*k,2)}, v{vS}, s[{SRD_PQ}:{SRD_PQ+3}], 0 offen offset:{8*k}", "pq")
    a("s_nop 1")
    softmax_pair(vP + 9, vO)
    for k in range(18):
        a.lg_op(f"ds_write_b16 v{vT5}, v{vO+k} offset:{(2*k)*VT_STR}", "vt")
        a.lg_op(f"ds_write_b16_d16_hi v{vT5}, v{vO+k} offset:{(2*k+1)*VT_STR}", "vt")
    a.wait_lg("vt")
    a("s_barrier")
    stamp(a, 8)
    if os.environ.get("K1DUMP"):
        a("s_cmp_lg_u32 s2, 0")
        a("s_cbranch_scc1 L_nodump")
        a(f"s_add_u32 s60, s{sWS}, 0x8000000")
        a(f"s_addc_u32 s61, s{sWS+1}, 0")
        a("s_mov_b32 s62, 0x100000")
        a("s_mov_b32 s63, 0x00020000")
        a(f"v_lshlrev_b32 v{vT0}, 4, v0")
        for i in range(19):
            a(f"v_add_u32 v{vT1}, {i*4096}, v{vT0}")
            a(f"ds_read_b128 {vr(vE+4*(i%4),4)}, v{vT1}")
            a("s_waitcnt lgkmcnt(0)")
            a(f"s_mov_b32 s{sT0}, {i*4096}")
            a(f"buffer_store_dwordx4 {vr(vE+4*(i%4),4)}, v{vT0}, s[60:63], s{sT0} offen")
        a("s_waitcnt vmcnt(0)")
        a.label("L_nodump")
    a(f"s_lshr_b32 s{sT0}, s{sWV}, 1")
    a(f"s_and_b32 s{sT1}, s{sWV}, 1")
    a(f"v_mul_u32_u24 v{vT0}, {VT_STR}, v{vTT}")
    a(f"v_lshl_add_u32 v{vT0}, v{vG}, 4, v{vT0}")
    a(f"s_mul_i32 s{sT2}, s{sT0}, {48*VT_STR}")
    a(f"s_add_u32 s{sT2}, s{sT2}, {K1_PKT}")
    a(f"v_add_u32 v{vT1}, s{sT2}, v{vT0}")
    a(f"s_mul_i32 s{sT2}, s{sT0}, {32*VT_STR}")
    a(f"s_mul_i32 s{sT3}, s{sT1}, {16*VT_STR}")
    a(f"s_add_u32 s{sT2}, s{sT2}, s{sT3}")
    a(f"s_add_u32 s{sT2}, s{sT2}, {K1_VT}")
    a(f"v_add_u32 v{vT2}, s{sT2}, v{vT0}")
    vKA = vE
    vKB = vE + 48
    for k4 in range(4):
        a.lg_op(f"ds_read_b128 {vr(vKB+4*k4,4)}, v{vT2} offset:{k4*64}", ("kb", k4))
        for mb in range(3):
            a.lg_op(f"ds_read_b128 {vr(vKA+(k4*3+mb)*4,4)}, v{vT1} offset:{mb*16*VT_STR + k4*64}", ("ka", k4))
    for k4 in range(4):
        a.wait_lg(("ka", k4))
        for mb in range(3):
            c = "0" if k4 == 0 else ar(ACC2 + mb * 4, 4)
            a(f"v_mfma_f32_16x16x32_bf16 {ar(ACC2+mb*4,4)}, {vr(vKA+(k4*3+mb)*4,4)}, {vr(vKB+4*k4,4)}, {c}")
    a.nop(10)
    a(f"s_lshl_b32 s{sT2}, s{sNT}, 1")
    a(f"s_add_u32 s{sT2}, s{sT2}, s{sT0}")
    a(f"s_lshl_b32 s{sT3}, s{sMT}, 5")
    a(f"s_add_u32 s{sT2}, s{sT2}, s{sT3}")
    a(f"s_mul_i32 s{sT2}, s{sT2}, {48*32*4}")
    a(f"s_lshl_b32 s{sT3}, s{sT1}, 6")
    a(f"s_add_u32 s{sT2}, s{sT2}, s{sT3}")
    a(f"v_lshlrev_b32 v{vT0}, 2, v{vTT}")
    a(f"v_lshl_add_u32 v{vT0}, v{vG}, 9, v{vT0}")
    a(f"v_add_u32 v{vT0}, s{sT2}, v{vT0}")
    for mb in range(3):
        a(f"s_mov_b32 s{sT3}, {mb*2048}")
        for i in range(4):
            a.vm_op(f"buffer_store_dword a{ACC2+mb*4+i}, v{vT0}, s[{SRD_KV}:{SRD_KV+3}], s{sT3} offen offset:{i*128}", "kv")
    stamp(a, 9)
    stamps_out(a, 10, sWS, sWV)
    a.label(f"L_{label}_end")
    a("s_endpgm")
    return NV, NA, K1_LDS


def build():
    from gen_rest import gen_k2, gen_k3, gen_k4
    body = Asm()
    descs = []
    launches = []
    for gen, label, grid, block in (
        (gen_k1, "k1_ln_gemm1_kernel", 256, 256),
        (gen_k2, "k2_attn_out_kernel", 256, 256),
        (gen_k3, "k3_gemm2_kernel", 256, 256),
        (gen_k4, "k4_reduce_kernel", 576, 256),
    ):
        nv, na, lds = gen(body, label)
        descs.append(kernel_desc(label, nv, na))
        launches.append(f"; @launch kernel={label} grid=({grid},1,1) block=({block},1,1) lds={lds}")
    hdr = open("cdna_kernels/" + NAME + ".s.ref").read().split("; Override launch")[0]
    out = hdr + "\n".join(launches) + "\n"
    out += '.amdgcn_target "amdgcn-amd-amdhsa--gfx950"\n'
    out += body.text()
    out += '.section .rodata,"a"\n.p2align 6\n'
    out += "".join(".p2align 6\n" + d for d in descs)
    return out


if __name__ == "__main__":
    print("k1 layout conflicts (A,B):", check_k1_layout())
    txt = build()
    open("cdna_kernels/" + NAME + ".s", "w").write(txt)
    print("written", len(txt), "bytes")
```
